```python
import torch

def _softmax(x, axis=-1):
    return torch.softmax(x, dim=axis)
def _gelu(x):
    return torch.nn.functional.gelu(x, approximate="tanh")
def _silu(x):
    return torch.nn.functional.silu(x)
def _sigmoid(x):
    return torch.sigmoid(x)
def _layernorm(x, axis=-1, eps=1e-5):
    m = x.mean(dim=axis, keepdim=True)
    v = x.var(dim=axis, keepdim=True, unbiased=False)
    return (x - m) / torch.sqrt(v + eps)
def _scatter_add(tgt, idx, src, axis=0):
    return tgt.clone().index_add_(axis, idx, src)
def _segment_sum(src, seg, n):
    out = torch.zeros((n,) + src.shape[1:], dtype=src.dtype)
    return out.index_add_(0, seg, src)
def _pad(x, pw):
    flat = tuple(v for pair in reversed(pw) for v in pair)
    return torch.nn.functional.pad(x, flat)

kernel_name = 'standalone__linear_kernel_performer__prompt'

def setup_inputs():

    _w = (lambda a: (lambda t: t.to(torch.bfloat16) if t.is_floating_point() else t)(torch.as_tensor(a)))
    B, H, S, D = 1, 32, 2048, 128
    M = D
    return {
        "q": _w((lambda *s: torch.randn(*s, dtype=torch.bfloat16) * 0.05)(B, H, S, D)),
        "k": _w((lambda *s: torch.randn(*s, dtype=torch.bfloat16) * 0.8)(B, H, S, D)),
        "v": _w((lambda *s: torch.randn(*s, dtype=torch.bfloat16) * 0.8)(B, H, S, D)),
        "proj": _w((lambda *s: torch.randn(*s, dtype=torch.bfloat16) * 0.8)(M, D)),
    }

def reference(q, k, v, proj):
    B, H, S, D = q.shape
    M = proj.shape[0]
    scale = D ** -0.25
    qs = q * scale
    ks = k * scale
    qw = torch.einsum("bhsd,md->bhsm", qs, proj)
    kw = torch.einsum("bhsd,md->bhsm", ks, proj)
    qn = torch.einsum("bhsd,bhsd->bhs", qs, qs)[..., None] * 0.5
    kn = torch.einsum("bhsd,bhsd->bhs", ks, ks)[..., None] * 0.5
    inv_sqrt_m = M ** -0.5
    phi_q = torch.exp(qw - qn) * inv_sqrt_m
    phi_k = torch.exp(kw - kn) * inv_sqrt_m
    kv = torch.einsum("bhsm,bhsd->bhmd", phi_k, v)
    ksum = torch.einsum("bhsm->bhm", phi_k)
    num = torch.einsum("bhsm,bhmd->bhsd", phi_q, kv)
    den = torch.einsum("bhsm,bhm->bhs", phi_q, ksum)[..., None] + 1e-6
    return num / den
```

```python
import re

TRANS = ('v_exp_', 'v_log_', 'v_rcp_', 'v_rsq_', 'v_sqrt_', 'v_sin_', 'v_cos_')


def v(i, n=1):
    return f"v{i}" if n == 1 else f"v[{i}:{i+n-1}]"


def a(i, n=1):
    return f"a{i}" if n == 1 else f"a[{i}:{i+n-1}]"


def s(i, n=1):
    return f"s{i}" if n == 1 else f"s[{i}:{i+n-1}]"


_reg_re = re.compile(r'^-?(?:abs\()?\|?([vas])(?:(\d+)|\[(\d+):(\d+)\])\|?\)?$')


def regs_of(op):
    op = op.strip()
    if op in ('vcc', 'vcc_lo', 'vcc_hi'):
        return {('s', 'vcc')}
    if op in ('exec', 'exec_lo', 'exec_hi'):
        return {('s', 'exec')}
    if op == 'm0':
        return {('s', 'm0')}
    m = _reg_re.match(op)
    if not m:
        return set()
    k = m.group(1)
    if m.group(2) is not None:
        return {(k, int(m.group(2)))}
    return {(k, i) for i in range(int(m.group(3)), int(m.group(4)) + 1)}


class Ins:
    __slots__ = ('text', 'mn', 'ops', 'cls', 'w', 'r', 'srcA', 'srcB', 'srcC', 'passes', 'states', 'dpp', 'data', 'wide', 'lds_dma')

    def __init__(self, text):
        self.text = text
        t = text.split(';')[0].strip()
        parts = t.split(None, 1)
        self.mn = parts[0]
        rest = parts[1] if len(parts) > 1 else ''
        ops, depth, cur = [], 0, ''
        for ch in rest:
            if ch in '[(':
                depth += 1
            if ch in '])':
                depth -= 1
            if ch == ',' and depth == 0:
                ops.append(cur.strip()); cur = ''
            else:
                cur += ch
        if cur.strip():
            ops.append(cur.strip())
        mods = ''
        if ops:
            lp = ops[-1].split(None, 1)
            ops[-1] = lp[0]
            mods = lp[1] if len(lp) > 1 else ''
        self.ops = ops
        mn = self.mn
        self.w = set(); self.r = set()
        self.srcA = self.srcB = self.srcC = set()
        self.passes = 0; self.states = 1; self.dpp = False
        self.data = set(); self.wide = False; self.lds_dma = False
        R = [regs_of(o) for o in ops]
        if mn.startswith('v_mfma'):
            self.cls = 'mfma'
            self.w = R[0]; self.srcA = R[1]; self.srcB = R[2]; self.srcC = R[3]
            self.r = R[1] | R[2] | R[3]
            self.passes = 8 if '32x32x16' in mn else 4 if '16x16x32' in mn else None
            assert self.passes, mn
        elif mn.startswith('v_'):
            self.cls = 'valu'
            if mn.startswith('v_cmp'):
                self.w = R[0]; self.r = set().union(*R[1:])
            elif mn.startswith('v_permlane') and 'swap' in mn:
                self.w = R[0] | R[1]; self.r = R[0] | R[1]
            elif mn.startswith(('v_add_co', 'v_sub_co', 'v_addc_co', 'v_subb_co')):
                self.w = R[0] | R[1]; self.r = set().union(*R[2:])
            elif mn == 'v_nop':
                pass
            else:
                self.w = R[0]; self.r = set().union(*R[1:]) if len(R) > 1 else set()
                if mn.startswith(('v_fmac', 'v_dot2c', 'v_writelane')) or 'dst_unused:UNUSED_PRESERVE' in mods:
                    self.r |= R[0]
                if mn.startswith('v_cndmask') and len(R) == 3:
                    self.r |= {('s', 'vcc')}
            if '_dpp' in mn or 'row_' in mods or 'quad_perm' in mods or 'row_bcast' in mods:
                self.dpp = True
                self.r |= R[0]
        elif mn.startswith('ds_'):
            self.cls = 'ds'
            if mn.startswith(('ds_read', 'ds_bpermute', 'ds_permute', 'ds_swizzle')) or '_rtn' in mn:
                self.w = R[0]; self.r = set().union(*R[1:])
            else:
                self.r = set().union(*R)
        elif mn.startswith(('buffer_', 'global_')):
            self.cls = 'vmem'
            words = (mods + ' ' + ' '.join(ops)).split()
            if mn in ('buffer_wbl2', 'buffer_inv'):
                pass
            elif 'lds' in mods.split() or mn.startswith('global_load_lds'):
                self.lds_dma = True
                self.r = set().union(*R)
            elif 'load' in mn:
                self.w = R[0]; self.r = set().union(*R[1:])
            elif 'store' in mn:
                self.r = set().union(*R)
                self.data = R[0] if mn.startswith('buffer_') else R[1]
                self.wide = mn.endswith(('x3', 'x4'))
            elif 'atomic' in mn:
                self.r = set().union(*R)
                if 'sc0' in mods.split():
                    self.w = R[0]
            else:
                raise ValueError(text)
        elif mn.startswith('s_'):
            self.cls = 'salu'
            if mn == 's_nop':
                self.states = int(ops[0], 0) + 1
            elif mn.startswith(('s_waitcnt', 's_barrier', 's_branch', 's_cbranch', 's_endpgm', 's_sleep', 's_setprio')):
                pass
            elif mn.startswith('s_cmp'):
                self.r = set().union(*R)
            else:
                self.w = R[0] if R else set()
                self.r = set().union(*R[1:]) if len(R) > 1 else set()
                if 'saveexec' in mn:
                    self.w |= {('s', 'exec')}
        else:
            raise ValueError('unknown instr: ' + text)

    def is_trans(self):
        return self.mn.startswith(TRANS)

    def is_dot(self):
        return self.mn.startswith('v_dot')


def vec(regs):
    return {x for x in regs if x[0] in 'va'}


def sca(regs):
    return {x for x in regs if x[0] == 's'}


def need(p, c):
    n = 0
    pw_v = vec(p.w)
    if p.cls == 'valu':
        if c.cls == 'mfma' and pw_v & c.r:
            n = max(n, 2)
        if c.cls == 'valu':
            if p.is_trans() and not c.is_trans() and pw_v & c.r:
                n = max(n, 1)
            if c.mn.startswith('v_permlane') and pw_v & c.r:
                n = max(n, 2)
            if c.mn.startswith(('v_readlane', 'v_readfirstlane')) and pw_v & c.r:
                n = max(n, 1)
            if c.dpp and pw_v & c.r:
                n = max(n, 2)
            if sca(p.w) & c.r:
                n = max(n, 4 if c.mn.startswith(('v_readlane', 'v_writelane')) else 2)
            if ('sdwa' in p.mn or 'op_sel' in p.text) and pw_v & (c.r | c.w):
                n = max(n, 1)
        if p.is_dot():
            if c.mn == p.mn:
                ab = set().union(*[regs_of(o) for o in c.ops[1:3]])
                if pw_v & ab:
                    n = max(n, 3)
            elif pw_v & (c.r | c.w):
                n = max(n, 3)
        if c.cls == 'vmem' and sca(p.w) & c.r:
            n = max(n, 5)
        if c.cls == 'salu' and sca(p.w) & c.r:
            n = max(n, 1)
    if p.cls == 'mfma':
        P = p.passes
        if c.cls == 'mfma':
            if p.w & c.srcC:
                if not (p.w == c.srcC and c.passes == P):
                    n = max(n, P + 2)
            if p.w & (c.srcA | c.srcB):
                n = max(n, P + 4)
            if (p.w & c.w) and not (p.w & c.srcC):
                n = max(n, P + 4)
        elif c.cls in ('valu', 'ds', 'vmem'):
            if p.w & (c.r | c.w):
                n = max(n, P + 4)
            if c.cls == 'valu' and p.srcC & c.w:
                n = max(n, P - 1)
    if p.cls == 'vmem' and p.wide and p.data & c.w:
        n = max(n, 2 if c.cls in ('valu', 'mfma') else 1)
    if p.cls == 'salu' and ('s', 'm0') in p.w and c.cls == 'vmem' and c.lds_dma:
        n = max(n, 1)
    return n


class Emitter:
    def __init__(self):
        self.lines = []

    def __call__(self, text):
        for t in text.split('\n'):
            t = t.strip()
            if not t:
                continue
            if t.startswith(';') or t.startswith('.') or t.endswith(':'):
                self.lines.append(t)
            else:
                self.lines.append(Ins(t))

    def c(self, txt):
        self.lines.append('; ' + txt)

    def fence(self, n=16):
        while n > 0:
            k = min(n, 16)
            self(f's_nop {k-1}')
            n -= k

    def render(self):
        out = []
        hist = []
        nops = 0
        for x in self.lines:
            if isinstance(x, str):
                out.append(x if (x.endswith(':') or x.startswith('.')) else '    ' + x)
                continue
            dist = 0
            req = 0
            for p in reversed(hist):
                k = need(p, x) - dist
                if k > req:
                    req = k
                dist += p.states
                if dist >= 20:
                    break
            while req > 0:
                k = min(req, 16)
                ni = Ins(f's_nop {k-1}')
                hist.append(ni); out.append('    ' + ni.text); nops += 1
                req -= k
            hist.append(x)
            if len(hist) > 40:
                hist = hist[-40:]
            out.append('    ' + x.text)
        self.nops = nops
        return '\n'.join(out) + '\n'
```

```python
import sys, struct, math
sys.path.insert(0, 'gen')
from asmlib import *

def f2u(x): return struct.unpack('<I', struct.pack('<f', x))[0]
SCALE = 128 ** -0.25
LOG2E = 1.4426950408889634
C1 = SCALE * LOG2E
C2 = 0.5 * SCALE * SCALE * LOG2E
HDR = open('standalone__linear_kernel_performer__prompt.s.ref').read().split('; Override')[0]

KB, VB, PB, SCR = 0, 65536, 122880, 155648
KVF, KSF = 0, 33280
LDS_BYTES = 163840
PSTR = 0x9000
sK, sV, sQ, sO, sP, sW, sD = 16, 20, 24, 28, 32, 36, 40
sWAVE, sHEAD, sCH, sT0, sT1, sC1, sC2, sLO, sHI, sLW, sB = 44, 45, 46, 47, 48, 49, 50, 51, 52, 53, 56
sEPS, sONES = 54, 55

def kernel(name, do_p1, do_p2, sync):
    E = Emitter()
    L = lambda x: f'{name}_{x}'
    E(f'.globl {name}\n.p2align 8\n.type {name},@function\n{name}:')
    E(f's_cmp_ge_u32 s2, 256')
    E(f's_cbranch_scc1 {L("end")}')
    E('s_load_dwordx4 s[4:7], s[0:1], 0')
    E('s_load_dwordx4 s[8:11], s[0:1], 16')
    E('s_load_dwordx4 s[12:15], s[0:1], 32')
    E('s_load_dwordx2 s[60:61], s[0:1], 48')
    E(f'v_lshrrev_b32 v1, 6, v0')
    E(f'v_and_b32 v0, 63, v0')
    E(f'v_readfirstlane_b32 {s(sWAVE)}, v1')
    E(f's_and_b32 {s(sHEAD)}, s2, 7')
    E(f's_lshr_b32 {s(sT0)}, s2, 6')
    E(f's_lshl_b32 {s(sT0)}, {s(sT0)}, 3')
    E(f's_or_b32 {s(sHEAD)}, {s(sHEAD)}, {s(sT0)}')
    E(f's_lshr_b32 {s(sCH)}, s2, 3')
    E(f's_and_b32 {s(sCH)}, {s(sCH)}, 7')
    E(f's_lshl_b32 {s(sT0)}, {s(sHEAD)}, 19')
    E(f's_lshl_b32 {s(sT1)}, {s(sCH)}, 16')
    E(f's_or_b32 {s(sT0)}, {s(sT0)}, {s(sT1)}')
    E(f's_mul_i32 {s(sT1)}, {s(sHEAD)}, {8*PSTR}')
    E(f's_mov_b32 {s(sC1)}, {f2u(C1)}')
    E(f's_mov_b32 {s(sC2)}, {f2u(C2)}')
    E(f's_mov_b32 {s(sLO)}, 0x00003f80')
    E(f's_mov_b32 {s(sHI)}, 0x3f800000')
    E(f's_mov_b32 {s(sONES)}, 0x3f803f80')
    E(f's_mov_b32 {s(sEPS)}, {f2u(1e-6)}')
    for b in range(4): E(f's_mov_b32 {s(sB+b)}, {b*4096}')
    E('s_waitcnt lgkmcnt(0)')
    def srd(d, base, off, size):
        if off is None:
            E(f's_mov_b32 {s(d)}, {s(base)}'); E(f's_mov_b32 {s(d+1)}, {s(base+1)}')
        else:
            E(f's_add_u32 {s(d)}, {s(base)}, {s(off)}'); E(f's_addc_u32 {s(d+1)}, {s(base+1)}, 0')
        E(f's_mov_b32 {s(d+2)}, {size}'); E(f's_mov_b32 {s(d+3)}, 0x00020000')
    srd(sK, 6, sT0, 65536); srd(sV, 8, sT0, 65536); srd(sP, 10, None, 32768)
    srd(sQ, 4, sT0, 65536); srd(sO, 12, sT0, 65536); srd(sD, 14, None, 256); srd(sW, 60, sT1, 8*PSTR)
    E(f's_cmp_ge_u32 {s(sWAVE)}, 4')
    E(f's_cbranch_scc1 {L("qrole")}')

    vKa, vVa, vNw, vNr, vKs, vDt = 10, 18, 22, 23, 24, 26
    vP, vK, vV, vS, vN, vPhi, vAcc = 32, 64, 96, 128, 144, 160, 176
    E.c('KV role')
    E('v_and_b32 v2, 31, v0')
    E('v_lshrrev_b32 v3, 5, v0')
    E('v_and_b32 v4, 15, v0')
    if do_p1:
        E('v_xor_b32 v5, v3, v4')
        E('v_lshlrev_b32 v5, 4, v5')
        E('v_lshl_add_u32 v5, v2, 8, v5')
        for j in range(8): E(f'v_xor_b32 {v(vKa+j)}, {32*j}, v5')
        E('v_lshrrev_b32 v5, 2, v4')
        E('v_lshl_add_u32 v6, v3, 2, v5')
        E('v_lshlrev_b32 v6, 8, v6')
        E('v_bfe_u32 v7, v0, 4, 1')
        E('v_lshl_add_u32 v6, v7, 5, v6')
        E('v_and_b32 v7, 3, v4')
        E('v_lshl_add_u32 v6, v7, 3, v6')
        E(f'v_add_u32 v6, {VB}, v6')
        for dt in range(4):
            E(f'v_xor_b32 v7, {dt}, v5')
            E(f'v_lshl_add_u32 {v(vVa+dt)}, v7, 6, v6')
        E(f's_lshl_b32 {s(sT0)}, {s(sWAVE)}, 7')
        E(f's_add_u32 {s(sT0)}, {s(sT0)}, {SCR}')
        E(f'v_lshl_add_u32 {v(vNw)}, v2, 2, {s(sT0)}')
        E(f'v_lshl_add_u32 {v(vNr)}, v3, 4, {s(sT0)}')
        E(f'v_mov_b32 {v(vKs)}, 0'); E(f'v_mov_b32 {v(vKs+1)}, 0')
        for i in range(64): E(f'v_mov_b32 {v(vAcc+i)}, 0')
        E(f's_lshl_b32 {s(sT0)}, {s(sWAVE)}, 13')
        E(f's_add_u32 {s(sT0)}, {s(sT0)}, {PB}')
        for j in range(8): E(f'v_add_u32 {v(vV+j)}, {s(sT0)}, {v(vKa+j)}')

        def readK(t):
            for j in range(8): E(f'ds_read_b128 {v(vK+4*j,4)}, {v(vKa+j)} offset:{KB+t*8192}')
        def readV(t):
            slot = t % 7
            for tt in range(2):
                for dt in range(4):
                    for hf in range(2):
                        E(f'ds_read_b64_tr_b16 {v(vV+(tt*4+dt)*4+2*hf,2)}, {v(vVa+dt)} offset:{slot*8192+(16*tt+8*hf)*256}')
        def kn_and_step1(nV):
            for j in range(8):
                E(f's_waitcnt lgkmcnt({min(15, nV + 7 - j)})')
                E(f'v_mfma_f32_32x32x16_bf16 {v(vS,16)}, {v(vK+4*j,4)}, {v(vP+4*j,4)}, ' + ('0' if j == 0 else v(vS,16)))
                for e in range(4):
                    r = vK + 4*j + e
                    if j == 0: E(f'v_dot2_f32_bf16 {v(vDt+e)}, {v(r)}, {v(r)}, 0')
                    else: E(f'v_dot2c_f32_bf16 {v(vDt+e)}, {v(r)}, {v(r)}')
            E(f'v_add_f32 {v(vDt)}, {v(vDt)}, {v(vDt+1)}')
            E(f'v_add_f32 {v(vDt+2)}, {v(vDt+2)}, {v(vDt+3)}')
            E(f'v_add_f32 {v(vDt)}, {v(vDt)}, {v(vDt+2)}')
            E(f'v_mov_b32 {v(vDt+1)}, {v(vDt)}')
            E(f'v_permlane32_swap_b32 {v(vDt)}, {v(vDt+1)}')
            E(f'v_add_f32 {v(vDt)}, {v(vDt)}, {v(vDt+1)}')
            E(f'v_mov_b32 {v(vDt+1)}, 0x40600000')
            E(f'v_fma_f32 {v(vDt)}, {v(vDt)}, {s(sC2)}, {v(vDt+1)}')
            E(f'ds_write_b32 {v(vNw)}, {v(vDt)}')
            E('s_waitcnt lgkmcnt(0)')
            for q in range(4): E(f'ds_read_b128 {v(vN+4*q,4)}, {v(vNr)} offset:{32*q}')
        def step2_list(pb):
            out = []
            for tt in range(2):
                for dt in range(4):
                    out.append(f'v_mfma_f32_32x32x16_bf16 {v(vAcc+16*dt,16)}, {v(pb+4*tt,4)}, {v(vV+(tt*4+dt)*4,4)}, {v(vAcc+16*dt,16)}')
            return out
        def expo(pb, mf):
            mf = list(mf)
            if mf: E(mf.pop(0))
            E('s_waitcnt lgkmcnt(0)')
            for r2 in range(8):
                r = 2*r2
                E(f'v_fma_f32 {v(vS+r)}, {v(vS+r)}, {s(sC1)}, -{v(vN+r)}')
                E(f'v_fma_f32 {v(vS+r+1)}, {v(vS+r+1)}, {s(sC1)}, -{v(vN+r+1)}')
                E(f'v_exp_f32 {v(vS+r)}, {v(vS+r)}')
                E(f'v_exp_f32 {v(vS+r+1)}, {v(vS+r+1)}')
                if mf: E(mf.pop(0))
                E(f'v_cvt_pk_bf16_f32 {v(pb+r2)}, {v(vS+r)}, {v(vS+r+1)}')
                E(f'v_dot2c_f32_bf16 {v(vKs+(r2&1))}, {s(sONES)}, {v(pb+r2)}')
            for m in mf: E(m)

        E('s_barrier')
        for j in range(8): E(f'ds_read_b128 {v(vP+4*j,4)}, {v(vV+j)}')
        readK(0)
        kn_and_step1(0)
        expo(vPhi, [])
        for i in range(1, 8):
            E.c(f'iter {i}')
            E('s_barrier')
            readK(i); readV(i-1)
            kn_and_step1(16)
            expo(vPhi + 8*(i & 1), step2_list(vPhi + 8*((i-1) & 1)))
        E('s_barrier')
        readV(7)
        for n, m in enumerate(step2_list(vPhi + 8)):
            E(f's_waitcnt lgkmcnt({14-2*n})')
            E(m)
        E.c('publish')
        E(f'v_add_f32 {v(vKs)}, {v(vKs)}, {v(vKs+1)}')
        E(f'v_mov_b32 {v(vKs+1)}, {v(vKs)}')
        E(f'v_permlane32_swap_b32 {v(vKs)}, {v(vKs+1)}')
        E(f'v_add_f32 {v(vKs)}, {v(vKs)}, {v(vKs+1)}')
        E(f's_mul_i32 {s(sT0)}, {s(sCH)}, {PSTR}')
        E(f's_lshl_b32 {s(sT1)}, {s(sWAVE)}, 13')
        E(f's_add_u32 {s(sT1)}, {s(sT1)}, {s(sT0)}')
        E(f'v_lshlrev_b32 v5, 4, v0')
        E(f'v_add_u32 v6, 4096, v5')
        for dt in range(4):
            for qq in range(2):
                o = vK + (dt*2+qq)*4
                A = vAcc + 16*dt
                E(f'v_cvt_pk_bf16_f32 {v(o)}, {v(A+4*qq)}, {v(A+4*qq+1)}')
                E(f'v_cvt_pk_bf16_f32 {v(o+1)}, {v(A+4*qq+2)}, {v(A+4*qq+3)}')
                E(f'v_cvt_pk_bf16_f32 {v(o+2)}, {v(A+4*qq+8)}, {v(A+4*qq+9)}')
                E(f'v_cvt_pk_bf16_f32 {v(o+3)}, {v(A+4*qq+10)}, {v(A+4*qq+11)}')
                un = dt*2+qq
                E(f'buffer_store_dwordx4 {v(o,4)}, {v(5+(un>>2))}, {s(sW,4)}, {s(sT1)} offen offset:{(un&3)*1024} sc1')
        E(f's_lshl_b32 {s(sT1)}, {s(sWAVE)}, 7')
        E(f's_add_u32 {s(sT1)}, {s(sT1)}, {s(sT0)}')
        E(f's_add_u32 {s(sT1)}, {s(sT1)}, 0x8000')
        E(f'v_lshlrev_b32 v7, 2, v2')
        E(f'buffer_store_dword {v(vKs)}, v7, {s(sW,4)}, {s(sT1)} offen sc1')
        E('s_waitcnt vmcnt(0)')
        if sync:
            E(f's_lshl_b32 {s(sT0)}, {s(sHEAD)}, 2')
            E('v_mov_b32 v8, 1'); E('v_mov_b32 v9, 0')
            E('s_mov_b64 exec, 1')
            E(f'buffer_atomic_add v8, v9, {s(sD,4)}, {s(sT0)} offen sc1')
            E('s_mov_b64 exec, -1')
    else:
        E('s_barrier')
    if do_p2:
        if sync:
            E(f'{L("poll")}:')
            E(f'buffer_load_dword v8, v9, {s(sD,4)}, {s(sT0)} offen sc1')
            E('s_waitcnt vmcnt(0)')
            E(f'v_readfirstlane_b32 {s(sT1)}, v8')
            E(f's_cmp_ge_u32 {s(sT1)}, 32')
            E(f's_cbranch_scc1 {L("polled")}')
            E('s_sleep 2')
            E(f's_branch {L("poll")}')
            E(f'{L("polled")}:')
        E.c('reduce')
        vBuf = 32
        vKp = 160
        E(f'v_lshlrev_b32 v5, 4, v0')
        E(f'v_add_u32 v6, 4096, v5')
        E(f'v_lshlrev_b32 v7, 2, v2')
        E(f's_lshl_b32 {s(sT1)}, {s(sWAVE)}, 7')
        E(f's_add_u32 {s(sT1)}, {s(sT1)}, 0x8000')
        for p in range(8):
            E(f'buffer_load_dword {v(vKp+p)}, v7, {s(sW,4)}, {s(sT1)} offen sc1')
            if p < 7: E(f's_add_u32 {s(sT1)}, {s(sT1)}, {PSTR}')
        E(f's_lshl_b32 {s(sT1)}, {s(sWAVE)}, 13')
        def ldp(p):
            for un in range(8):
                E(f'buffer_load_dwordx4 {v(vBuf+(p&3)*32+un*4,4)}, {v(5+(un>>2))}, {s(sW,4)}, {s(sT1)} offen offset:{(un&3)*1024} sc1')
            if p < 7: E(f's_add_u32 {s(sT1)}, {s(sT1)}, {PSTR}')
        for p in range(4): ldp(p)
        E('v_and_b32 v8, 7, v2')
        E('v_mul_u32_u24 v8, 1040, v8')
        E('v_lshl_add_u32 v8, v3, 8, v8')
        E('v_lshrrev_b32 v9, 3, v2')
        E('v_lshl_add_u32 v8, v9, 4, v8')
        E(f's_mul_i32 {s(sT0)}, {s(sWAVE)}, 8320')
        E(f'v_add_u32 v8, {s(sT0)}, v8')
        E('v_bfe_u32 v9, v2, 2, 2')
        E('v_lshlrev_b32 v9, 4, v9')
        E('v_lshrrev_b32 v10, 4, v2')
        E('v_lshl_add_u32 v9, v10, 3, v9')
        E('v_and_b32 v10, 3, v2')
        E('v_lshl_add_u32 v9, v10, 1, v9')
        E(f's_lshl_b32 {s(sT0)}, {s(sWAVE)}, 6')
        E(f's_add_u32 {s(sT0)}, {s(sT0)}, {KSF}')
        E(f'v_add_u32 v9, {s(sT0)}, v9')
        E('s_waitcnt vmcnt(32)')
        for p in range(1, 8): E(f'v_add_f32 {v(vKp)}, {v(vKp)}, {v(vKp+p)}')
        E(f'v_cvt_pk_bf16_f32 {v(vKp)}, {v(vKp)}, {v(vKp)}')
        E(f'ds_write_b16 v9, {v(vKp)}')
        for p in range(8):
            out = min(7, p + 3) - p
            E(f's_waitcnt vmcnt({out*8})')
            B = vBuf + (p & 3)*32
            for i in range(32):
                if p == 0:
                    E(f'v_lshlrev_b32 {v(vAcc+2*i)}, 16, {v(B+i)}')
                    E(f'v_and_b32 {v(vAcc+2*i+1)}, 0xffff0000, {v(B+i)}')
                else:
                    E(f'v_dot2c_f32_bf16 {v(vAcc+2*i)}, {s(sLO)}, {v(B+i)}')
                    E(f'v_dot2c_f32_bf16 {v(vAcc+2*i+1)}, {s(sHI)}, {v(B+i)}')
            if p + 4 < 8: ldp(p + 4)
        for un in range(8):
            dt, qq = un >> 1, un & 1
            for e in range(4):
                E(f'v_cvt_pk_bf16_f32 {v(vBuf+un*4+e)}, {v(vAcc+un*8+2*e)}, {v(vAcc+un*8+2*e+1)}')
            E(f'ds_write_b128 v8, {v(vBuf+un*4,4)} offset:{KVF+qq*512+dt*64}')
        E('s_waitcnt lgkmcnt(0)')
        E('s_barrier')
    E('s_endpgm')

    E(f'{L("qrole")}:')
    E(f's_sub_u32 {s(sLW)}, {s(sWAVE)}, 4')
    E('v_lshrrev_b32 v2, 4, v0')
    E('v_and_b32 v3, 15, v0')
    E(f's_lshl_b32 {s(sT0)}, {s(sLW)}, 3')
    E(f'v_add_u32 v7, {s(sT0)}, v2')
    E('v_and_b32 v8, 15, v7')
    E('v_xor_b32 v8, v8, v3')
    E('v_lshlrev_b32 v8, 4, v8')
    E('v_lshl_add_u32 v4, v7, 8, v8')
    E('v_add_u32 v8, 4, v7')
    E('v_and_b32 v8, 15, v8')
    E('v_xor_b32 v8, v8, v3')
    E('v_lshlrev_b32 v8, 4, v8')
    E('v_lshl_add_u32 v5, v7, 8, v8')
    E('v_lshlrev_b32 v8, 2, v2')
    E('v_xor_b32 v8, v8, v3')
    E('v_lshlrev_b32 v8, 4, v8')
    E('v_lshl_add_u32 v6, v7, 8, v8')
    E(f's_lshl_b32 {s(sT1)}, {s(sLW)}, 11')
    issued = []
    def dma(tag, srd_, tile, ldsbase, va, vb):
        E(f's_add_u32 m0, {s(sT1)}, {ldsbase}')
        E(f's_mov_b32 {s(sT0)}, {tile*8192}')
        E(f'buffer_load_dwordx4 {v(va)}, {s(srd_,4)}, {s(sT0)} offen lds')
        E(f'buffer_load_dwordx4 {v(vb)}, {s(srd_,4)}, {s(sT0)} offen offset:1024 lds')
        issued.extend([tag, tag])
    def waitfor(tags):
        last = max(i for i, t in enumerate(issued) if t in tags)
        E(f's_waitcnt vmcnt({len(issued) - 1 - last})')
    vQ, vPq, vA, vD = 32, 96, 160, 224
    def loadQ():
        E(f's_lshl_b32 {s(sT0)}, {s(sLW)}, 14')
        E('v_lshlrev_b32 v9, 8, v3')
        E('v_lshl_add_u32 v9, v2, 4, v9')
        E(f'v_add_u32 v9, {s(sT0)}, v9')
        for b in range(4):
            for j in range(4):
                E(f'buffer_load_dwordx4 {v(vQ+b*16+j*4,4)}, v9, {s(sQ,4)}, {s(sB+b)} offen offset:{j*64}')
                issued.append(f'Q{b}')
    for t in range(4): dma('P', sP, t, PB + t*8192, 4, 5)
    if do_p1:
        dma('K0', sK, 0, KB, 4, 5)
        for i in range(1, 8):
            dma(f'K{i}', sK, i, KB + i*8192, 4, 5)
            dma(f'V{i-1}', sV, i-1, VB + (i-1)*8192, 6, 6)
        waitfor(['P', 'K0']); E('s_barrier')
        for i in range(1, 8):
            waitfor([f'K{i}', f'V{i-1}']); E('s_barrier')
            if i == 2:
                dma('V7', sV, 7, VB, 6, 6)
                if do_p2: loadQ()
        waitfor(['V7']); E('s_barrier')
    else:
        loadQ()
        waitfor(['P']); E('s_barrier')
    if do_p2:
        vPa, vQn = 10, 14
        for j in range(4):
            E(f'v_add_u32 v7, {4*j}, v2')
            E('v_xor_b32 v7, v7, v3')
            E('v_lshlrev_b32 v7, 4, v7')
            E(f'v_lshl_add_u32 v7, v3, 8, v7')
            E(f'v_add_u32 {v(vPa+j)}, {PB}, v7')
        def readP(u, buf):
            for tl in range(2):
                for j in range(4):
                    E(f'ds_read_b128 {v(vA+buf*32+(tl*4+j)*4,4)}, {v(vPa+j)} offset:{(2*u+tl)*4096}')
        for bp in range(2):
            readP(0, 0)
            waitfor([f'Q{2*bp+1}'])
            for bb in range(2):
                b = 2*bp + bb
                for i in range(16):
                    r = vQ + b*16 + i
                    if i < 2: E(f'v_dot2_f32_bf16 {v(20+i)}, {v(r)}, {v(r)}, 0')
                    else: E(f'v_dot2c_f32_bf16 {v(20+(i&1))}, {v(r)}, {v(r)}')
                E('v_add_f32 v20, v20, v21')
                E('v_mov_b32 v21, v20')
                E('v_permlane16_swap_b32 v20, v21')
                E('v_add_f32 v20, v20, v21')
                E('v_mov_b32 v21, v20')
                E('v_permlane32_swap_b32 v20, v21')
                E('v_add_f32 v20, v20, v21')
                E('v_mov_b32 v21, 0x40600000')
                E(f'v_fma_f32 {v(vQn+b)}, v20, {s(sC2)}, v21')
            for u in range(4):
                buf = u & 1
                if u < 3: readP(u+1, buf ^ 1)
                E(f's_waitcnt lgkmcnt({8 if u < 3 else 0})')
                for bb in range(2):
                    b = 2*bp + bb
                    for tl in range(2):
                        D = vD + buf*16 + (bb*2+tl)*4
                        for j in range(4):
                            E(f'v_mfma_f32_16x16x32_bf16 {v(D,4)}, {v(vA+buf*32+(tl*4+j)*4,4)}, {v(vQ+b*16+j*4,4)}, ' + ('0' if j == 0 else v(D,4)))
                for bb in range(2):
                    b = 2*bp + bb
                    for tl in range(2):
                        D = vD + buf*16 + (bb*2+tl)*4
                        for r in range(4): E(f'v_fma_f32 {v(D+r)}, {v(D+r)}, {s(sC1)}, -{v(vQn+b)}')
                        for r in range(4): E(f'v_exp_f32 {v(D+r)}, {v(D+r)}')
                        E(f'v_cvt_pk_bf16_f32 {v(vPq+b*16+u*4+tl*2)}, {v(D)}, {v(D+1)}')
                        E(f'v_cvt_pk_bf16_f32 {v(vPq+b*16+u*4+tl*2+1)}, {v(D+2)}, {v(D+3)}')
        E(f's_lshl_b32 {s(sT0)}, {s(sLW)}, 14')
        E('v_lshlrev_b32 v9, 10, v2')
        E('v_lshl_add_u32 v9, v3, 4, v9')
        E(f'v_add_u32 v9, {s(sT0)}, v9')
        E('v_lshlrev_b32 v7, 4, v0')
        E(f'v_lshlrev_b32 v8, 4, v2')
        E('s_barrier')
        vO, vF, vDen, vT = 160, 32, 232, 20
        for u in range(4): E(f'ds_read_b128 {v(vDen+4*u,4)}, v8 offset:{KSF+u*64}')
        for bp in range(2):
            frs = [(u, dt) for u in range(4) for dt in range(8)]
            NB = 12
            def rd(n):
                u, dt = frs[n]
                E(f'ds_read_b128 {v(vF+(n % NB)*4,4)}, v7 offset:{KVF+(u*8+dt)*1040}')
            for n in range(NB): rd(n)
            for n, (u, dt) in enumerate(frs):
                E(f's_waitcnt lgkmcnt({min(NB-1, len(frs)-1-n)})')
                for bb in range(2):
                    b = 2*bp + bb
                    A = vO + bb*36 + dt*4
                    E(f'v_mfma_f32_16x16x32_bf16 {v(A,4)}, {v(vPq+b*16+u*4,4)}, {v(vF+(n % NB)*4,4)}, ' + ('0' if u == 0 else v(A,4)))
                if dt == 0:
                    for bb in range(2):
                        b = 2*bp + bb
                        A = vO + bb*36 + 32
                        E(f'v_mfma_f32_16x16x32_bf16 {v(A,4)}, {v(vPq+b*16+u*4,4)}, {v(vDen+4*u,4)}, ' + ('0' if u == 0 else v(A,4)))
                if n + NB < len(frs): rd(n + NB)
            for bb in range(2):
                b = 2*bp + bb
                A = vO + bb*36
                for r in range(4): E(f'v_add_f32 {v(A+32+r)}, {s(sEPS)}, {v(A+32+r)}')
                for r in range(4): E(f'v_rcp_f32 {v(A+32+r)}, {v(A+32+r)}')
                for r in range(4):
                    T = 80 + (bb*4 + r) % 4 * 4
                    for dt in range(8): E(f'v_mul_f32 {v(A+dt*4+r)}, {v(A+dt*4+r)}, {v(A+32+r)}')
                    for e in range(4): E(f'v_cvt_pk_bf16_f32 {v(T+e)}, {v(A+2*e*4+r)}, {v(A+(2*e+1)*4+r)}')
                    E(f'buffer_store_dwordx4 {v(T,4)}, v9, {s(sO,4)}, {s(sB+b)} offen offset:{r*256}')
    E(f'{L("end")}:')
    E('s_endpgm')
    return E.render()

def desc(name):
    return f'''.section .rodata,"a"
.p2align 6
.amdhsa_kernel {name}
  .amdhsa_next_free_vgpr 256
  .amdhsa_next_free_sgpr 64
  .amdhsa_accum_offset 256
  .amdhsa_group_segment_fixed_size 0
  .amdhsa_kernarg_size 56
  .amdhsa_user_sgpr_count 2
  .amdhsa_user_sgpr_kernarg_segment_ptr 1
  .amdhsa_system_sgpr_workgroup_id_x 1
.end_amdhsa_kernel
'''
MAIN = 'standalone__linear_kernel_performer__prompt_kernel'
mode = sys.argv[1]
if mode == 'two':
    txt = HDR + f'; @launch kernel=pa_kernel grid=(256,1,1) block=(512,1,1) lds={LDS_BYTES}\n; @launch kernel=pb_kernel grid=(256,1,1) block=(512,1,1) lds={LDS_BYTES}\n'
    txt += '.amdgcn_target "amdgcn-amd-amdhsa--gfx950"\n.text\n'
    txt += kernel('pa_kernel', True, False, False) + kernel('pb_kernel', False, True, False)
    txt += desc('pa_kernel') + desc('pb_kernel')
else:
    txt = HDR + f'; @launch grid=(256,1,1) block=(512,1,1) lds={LDS_BYTES}\n'
    txt += '.amdgcn_target "amdgcn-amd-amdhsa--gfx950"\n.text\n'
    txt += kernel(MAIN, True, True, True) + desc(MAIN)
open(sys.argv[2], 'w').write(txt)
```

```python
import sys, struct, math
sys.path.insert(0, 'gen')
from asmlib import *

def f2u(x): return struct.unpack('<I', struct.pack('<f', x))[0]
SCALE = 128 ** -0.25
LOG2E = 1.4426950408889634
C1 = SCALE * LOG2E
C2 = 0.5 * SCALE * SCALE * LOG2E
HDR = open('standalone__linear_kernel_performer__prompt.s.ref').read().split('; Override')[0]

KB, VB, PB, SCR = 0, 65536, 122880, 155648
KVF, KSF = 0, 33280
LDS_BYTES = 163840
PSTR = 0x9000
sK, sV, sQ, sO, sP, sW, sD = 16, 20, 24, 28, 32, 36, 40
sWAVE, sHEAD, sCH, sT0, sT1, sC1, sC2, sLO, sHI, sLW, sB = 44, 45, 46, 47, 48, 49, 50, 51, 52, 53, 56
sEPS, sONES = 54, 55

def kernel(name, do_p1, do_p2, sync):
    E = Emitter()
    L = lambda x: f'{name}_{x}'
    E(f'.globl {name}\n.p2align 8\n.type {name},@function\n{name}:')
    E(f's_cmp_ge_u32 s2, 256')
    E(f's_cbranch_scc1 {L("end")}')
    E('s_load_dwordx4 s[4:7], s[0:1], 0')
    E('s_load_dwordx4 s[8:11], s[0:1], 16')
    E('s_load_dwordx4 s[12:15], s[0:1], 32')
    E('s_load_dwordx2 s[60:61], s[0:1], 48')
    E(f'v_lshrrev_b32 v1, 6, v0')
    E(f'v_and_b32 v0, 63, v0')
    E(f'v_readfirstlane_b32 {s(sWAVE)}, v1')
    E(f's_and_b32 {s(sHEAD)}, s2, 7')
    E(f's_lshr_b32 {s(sT0)}, s2, 6')
    E(f's_lshl_b32 {s(sT0)}, {s(sT0)}, 3')
    E(f's_or_b32 {s(sHEAD)}, {s(sHEAD)}, {s(sT0)}')
    E(f's_lshr_b32 {s(sCH)}, s2, 3')
    E(f's_and_b32 {s(sCH)}, {s(sCH)}, 7')
    E(f's_lshl_b32 {s(sT0)}, {s(sHEAD)}, 19')
    E(f's_lshl_b32 {s(sT1)}, {s(sCH)}, 16')
    E(f's_or_b32 {s(sT0)}, {s(sT0)}, {s(sT1)}')
    E(f's_mul_i32 {s(sT1)}, {s(sHEAD)}, {8*PSTR}')
    E(f's_mov_b32 {s(sC1)}, {f2u(C1)}')
    E(f's_mov_b32 {s(sC2)}, {f2u(C2)}')
    E(f's_mov_b32 {s(sLO)}, 0x00003f80')
    E(f's_mov_b32 {s(sHI)}, 0x3f800000')
    E(f's_mov_b32 {s(sONES)}, 0x3f803f80')
    E(f's_mov_b32 {s(sEPS)}, {f2u(1e-6)}')
    for b in range(4): E(f's_mov_b32 {s(sB+b)}, {b*4096}')
    E('s_waitcnt lgkmcnt(0)')
    def srd(d, base, off, size):
        if off is None:
            E(f's_mov_b32 {s(d)}, {s(base)}'); E(f's_mov_b32 {s(d+1)}, {s(base+1)}')
        else:
            E(f's_add_u32 {s(d)}, {s(base)}, {s(off)}'); E(f's_addc_u32 {s(d+1)}, {s(base+1)}, 0')
        E(f's_mov_b32 {s(d+2)}, {size}'); E(f's_mov_b32 {s(d+3)}, 0x00020000')
    srd(sK, 6, sT0, 65536); srd(sV, 8, sT0, 65536); srd(sP, 10, None, 32768)
    srd(sQ, 4, sT0, 65536); srd(sO, 12, sT0, 65536); srd(sD, 14, None, 256); srd(sW, 60, sT1, 8*PSTR)
    E(f's_cmp_ge_u32 {s(sWAVE)}, 4')
    E(f's_cbranch_scc1 {L("qrole")}')

    vKa, vVa, vNw, vNr, vKs, vDt = 10, 18, 22, 23, 24, 26
    vP, vK, vV, vS, vN, vPhi, vAcc = 32, 64, 96, 128, 144, 160, 176
    E.c('KV role')
    E('v_and_b32 v2, 31, v0')
    E('v_lshrrev_b32 v3, 5, v0')
    E('v_and_b32 v4, 15, v0')
    if do_p1:
        E('v_xor_b32 v5, v3, v4')
        E('v_lshlrev_b32 v5, 4, v5')
        E('v_lshl_add_u32 v5, v2, 8, v5')
        for j in range(8): E(f'v_xor_b32 {v(vKa+j)}, {32*j}, v5')
        E('v_lshrrev_b32 v5, 2, v4')
        E('v_lshl_add_u32 v6, v3, 2, v5')
        E('v_lshlrev_b32 v6, 8, v6')
        E('v_bfe_u32 v7, v0, 4, 1')
        E('v_lshl_add_u32 v6, v7, 5, v6')
        E('v_and_b32 v7, 3, v4')
        E('v_lshl_add_u32 v6, v7, 3, v6')
        E(f'v_add_u32 v6, {VB}, v6')
        for dt in range(4):
            E(f'v_xor_b32 v7, {dt}, v5')
            E(f'v_lshl_add_u32 {v(vVa+dt)}, v7, 6, v6')
        E(f's_lshl_b32 {s(sT0)}, {s(sWAVE)}, 7')
        E(f's_add_u32 {s(sT0)}, {s(sT0)}, {SCR}')
        E(f'v_lshl_add_u32 {v(vNw)}, v2, 2, {s(sT0)}')
        E(f'v_lshl_add_u32 {v(vNr)}, v3, 4, {s(sT0)}')
        E(f'v_mov_b32 {v(vKs)}, 0'); E(f'v_mov_b32 {v(vKs+1)}, 0')
        for i in range(64): E(f'v_mov_b32 {v(vAcc+i)}, 0')
        E(f's_lshl_b32 {s(sT0)}, {s(sWAVE)}, 13')
        E(f's_add_u32 {s(sT0)}, {s(sT0)}, {PB}')
        for j in range(8): E(f'v_add_u32 {v(vV+j)}, {s(sT0)}, {v(vKa+j)}')

        def readK(t):
            for j in range(8): E(f'ds_read_b128 {v(vK+4*j,4)}, {v(vKa+j)} offset:{KB+t*8192}')
        def readV(t):
            slot = t % 7
            for tt in range(2):
                for dt in range(4):
                    for hf in range(2):
                        E(f'ds_read_b64_tr_b16 {v(vV+(tt*4+dt)*4+2*hf,2)}, {v(vVa+dt)} offset:{slot*8192+(16*tt+8*hf)*256}')
        def kn_and_step1(nV):
            for j in range(8):
                E(f's_waitcnt lgkmcnt({min(15, nV + 7 - j)})')
                E(f'v_mfma_f32_32x32x16_bf16 {v(vS,16)}, {v(vK+4*j,4)}, {v(vP+4*j,4)}, ' + ('0' if j == 0 else v(vS,16)))
                for e in range(4):
                    r = vK + 4*j + e
                    if j == 0: E(f'v_dot2_f32_bf16 {v(vDt+e)}, {v(r)}, {v(r)}, 0')
                    else: E(f'v_dot2c_f32_bf16 {v(vDt+e)}, {v(r)}, {v(r)}')
            E(f'v_add_f32 {v(vDt)}, {v(vDt)}, {v(vDt+1)}')
            E(f'v_add_f32 {v(vDt+2)}, {v(vDt+2)}, {v(vDt+3)}')
            E(f'v_add_f32 {v(vDt)}, {v(vDt)}, {v(vDt+2)}')
            E(f'v_mov_b32 {v(vDt+1)}, {v(vDt)}')
            E(f'v_permlane32_swap_b32 {v(vDt)}, {v(vDt+1)}')
            E(f'v_add_f32 {v(vDt)}, {v(vDt)}, {v(vDt+1)}')
            E(f'v_mov_b32 {v(vDt+1)}, 0x40600000')
            E(f'v_fma_f32 {v(vDt)}, {v(vDt)}, {s(sC2)}, {v(vDt+1)}')
            E(f'ds_write_b32 {v(vNw)}, {v(vDt)}')
            E('s_waitcnt lgkmcnt(0)')
            for q in range(4): E(f'ds_read_b128 {v(vN+4*q,4)}, {v(vNr)} offset:{32*q}')
        def step2_list(pb):
            out = []
            for tt in range(2):
                for dt in range(4):
                    out.append(f'v_mfma_f32_32x32x16_bf16 {v(vAcc+16*dt,16)}, {v(pb+4*tt,4)}, {v(vV+(tt*4+dt)*4,4)}, {v(vAcc+16*dt,16)}')
            return out
        def expo(pb, mf):
            mf = list(mf)
            if mf: E(mf.pop(0))
            E('s_waitcnt lgkmcnt(0)')
            for r2 in range(8):
                r = 2*r2
                E(f'v_fma_f32 {v(vS+r)}, {v(vS+r)}, {s(sC1)}, -{v(vN+r)}')
                E(f'v_fma_f32 {v(vS+r+1)}, {v(vS+r+1)}, {s(sC1)}, -{v(vN+r+1)}')
                E(f'v_exp_f32 {v(vS+r)}, {v(vS+r)}')
                E(f'v_exp_f32 {v(vS+r+1)}, {v(vS+r+1)}')
                if mf: E(mf.pop(0))
                E(f'v_cvt_pk_bf16_f32 {v(pb+r2)}, {v(vS+r)}, {v(vS+r+1)}')
                E(f'v_dot2c_f32_bf16 {v(vKs+(r2&1))}, {s(sONES)}, {v(pb+r2)}')
            for m in mf: E(m)

        E('s_barrier')
        for j in range(8): E(f'ds_read_b128 {v(vP+4*j,4)}, {v(vV+j)}')
        readK(0)
        kn_and_step1(0)
        expo(vPhi, [])
        for i in range(1, 8):
            E.c(f'iter {i}')
            E('s_barrier')
            readK(i); readV(i-1)
            kn_and_step1(16)
            expo(vPhi + 8*(i & 1), step2_list(vPhi + 8*((i-1) & 1)))
        E('s_barrier')
        readV(7)
        for n, m in enumerate(step2_list(vPhi + 8)):
            E(f's_waitcnt lgkmcnt({14-2*n})')
            E(m)
        E.c('publish')
        E(f'v_add_f32 {v(vKs)}, {v(vKs)}, {v(vKs+1)}')
        E(f'v_mov_b32 {v(vKs+1)}, {v(vKs)}')
        E(f'v_permlane32_swap_b32 {v(vKs)}, {v(vKs+1)}')
        E(f'v_add_f32 {v(vKs)}, {v(vKs)}, {v(vKs+1)}')
        E(f's_mul_i32 {s(sT0)}, {s(sCH)}, {PSTR}')
        E(f's_lshl_b32 {s(sT1)}, {s(sWAVE)}, 13')
        E(f's_add_u32 {s(sT1)}, {s(sT1)}, {s(sT0)}')
        E(f'v_lshlrev_b32 v5, 4, v0')
        E(f'v_add_u32 v6, 4096, v5')
        for dt in range(4):
            for qq in range(2):
                o = vK + (dt*2+qq)*4
                A = vAcc + 16*dt
                E(f'v_cvt_pk_bf16_f32 {v(o)}, {v(A+4*qq)}, {v(A+4*qq+1)}')
                E(f'v_cvt_pk_bf16_f32 {v(o+1)}, {v(A+4*qq+2)}, {v(A+4*qq+3)}')
                E(f'v_cvt_pk_bf16_f32 {v(o+2)}, {v(A+4*qq+8)}, {v(A+4*qq+9)}')
                E(f'v_cvt_pk_bf16_f32 {v(o+3)}, {v(A+4*qq+10)}, {v(A+4*qq+11)}')
                un = dt*2+qq
                E(f'buffer_store_dwordx4 {v(o,4)}, {v(5+(un>>2))}, {s(sW,4)}, {s(sT1)} offen offset:{(un&3)*1024} sc1')
        E(f's_lshl_b32 {s(sT1)}, {s(sWAVE)}, 7')
        E(f's_add_u32 {s(sT1)}, {s(sT1)}, {s(sT0)}')
        E(f's_add_u32 {s(sT1)}, {s(sT1)}, 0x8000')
        E(f'v_lshlrev_b32 v7, 2, v2')
        E(f'buffer_store_dword {v(vKs)}, v7, {s(sW,4)}, {s(sT1)} offen sc1')
        E('s_waitcnt vmcnt(0)')
        if sync:
            E(f's_lshl_b32 {s(sT0)}, {s(sHEAD)}, 2')
            E('v_mov_b32 v8, 1'); E('v_mov_b32 v9, 0')
            E('s_mov_b64 exec, 1')
            E(f'buffer_atomic_add v8, v9, {s(sD,4)}, {s(sT0)} offen sc1')
            E('s_mov_b64 exec, -1')
    else:
        E('s_barrier')
    if do_p2:
        if sync:
            E('s_mov_b32 s62, 0')
            E(f'{L("poll")}:')
            E('s_add_u32 s62, s62, 1')
            E('s_cmp_ge_u32 s62, 200000')
            E(f's_cbranch_scc1 {L("polled")}')
            E(f'buffer_load_dword v8, v9, {s(sD,4)}, {s(sT0)} offen sc1')
            E('s_waitcnt vmcnt(0)')
            E(f'v_readfirstlane_b32 {s(sT1)}, v8')
            E(f's_cmp_ge_u32 {s(sT1)}, 32')
            E(f's_cbranch_scc1 {L("polled")}')
            E('s_sleep 2')
            E(f's_branch {L("poll")}')
            E(f'{L("polled")}:')
        E.c('reduce')
        vBuf = 32
        vKp = 160
        E(f'v_lshlrev_b32 v5, 4, v0')
        E(f'v_add_u32 v6, 4096, v5')
        E(f'v_lshlrev_b32 v7, 2, v2')
        E(f's_lshl_b32 {s(sT1)}, {s(sWAVE)}, 7')
        E(f's_add_u32 {s(sT1)}, {s(sT1)}, 0x8000')
        for p in range(8):
            E(f'buffer_load_dword {v(vKp+p)}, v7, {s(sW,4)}, {s(sT1)} offen sc1')
            if p < 7: E(f's_add_u32 {s(sT1)}, {s(sT1)}, {PSTR}')
        E(f's_lshl_b32 {s(sT1)}, {s(sWAVE)}, 13')
        def ldp(p):
            for un in range(8):
                E(f'buffer_load_dwordx4 {v(vBuf+(p&3)*32+un*4,4)}, {v(5+(un>>2))}, {s(sW,4)}, {s(sT1)} offen offset:{(un&3)*1024} sc1')
            if p < 7: E(f's_add_u32 {s(sT1)}, {s(sT1)}, {PSTR}')
        for p in range(4): ldp(p)
        E('v_and_b32 v8, 7, v2')
        E('v_mul_u32_u24 v8, 1040, v8')
        E('v_lshl_add_u32 v8, v3, 8, v8')
        E('v_lshrrev_b32 v9, 3, v2')
        E('v_lshl_add_u32 v8, v9, 4, v8')
        E(f's_mul_i32 {s(sT0)}, {s(sWAVE)}, 8320')
        E(f'v_add_u32 v8, {s(sT0)}, v8')
        E('v_bfe_u32 v9, v2, 2, 2')
        E('v_lshlrev_b32 v9, 4, v9')
        E('v_lshrrev_b32 v10, 4, v2')
        E('v_lshl_add_u32 v9, v10, 3, v9')
        E('v_and_b32 v10, 3, v2')
        E('v_lshl_add_u32 v9, v10, 1, v9')
        E(f's_lshl_b32 {s(sT0)}, {s(sWAVE)}, 6')
        E(f's_add_u32 {s(sT0)}, {s(sT0)}, {KSF}')
        E(f'v_add_u32 v9, {s(sT0)}, v9')
        E('s_waitcnt vmcnt(32)')
        for p in range(1, 8): E(f'v_add_f32 {v(vKp)}, {v(vKp)}, {v(vKp+p)}')
        E(f'v_cvt_pk_bf16_f32 {v(vKp)}, {v(vKp)}, {v(vKp)}')
        E(f'ds_write_b16 v9, {v(vKp)}')
        for p in range(8):
            out = min(7, p + 3) - p
            E(f's_waitcnt vmcnt({out*8})')
            B = vBuf + (p & 3)*32
            for i in range(32):
                if p == 0:
                    E(f'v_lshlrev_b32 {v(vAcc+2*i)}, 16, {v(B+i)}')
                    E(f'v_and_b32 {v(vAcc+2*i+1)}, 0xffff0000, {v(B+i)}')
                else:
                    E(f'v_dot2c_f32_bf16 {v(vAcc+2*i)}, {s(sLO)}, {v(B+i)}')
                    E(f'v_dot2c_f32_bf16 {v(vAcc+2*i+1)}, {s(sHI)}, {v(B+i)}')
            if p + 4 < 8: ldp(p + 4)
        for un in range(8):
            dt, qq = un >> 1, un & 1
            for e in range(4):
                E(f'v_cvt_pk_bf16_f32 {v(vBuf+un*4+e)}, {v(vAcc+un*8+2*e)}, {v(vAcc+un*8+2*e+1)}')
            E(f'ds_write_b128 v8, {v(vBuf+un*4,4)} offset:{KVF+qq*512+dt*64}')
        E('s_waitcnt lgkmcnt(0)')
        E('s_barrier')
    E('s_endpgm')

    E(f'{L("qrole")}:')
    E(f's_sub_u32 {s(sLW)}, {s(sWAVE)}, 4')
    E('v_lshrrev_b32 v2, 4, v0')
    E('v_and_b32 v3, 15, v0')
    E(f's_lshl_b32 {s(sT0)}, {s(sLW)}, 3')
    E(f'v_add_u32 v7, {s(sT0)}, v2')
    E('v_and_b32 v8, 15, v7')
    E('v_xor_b32 v8, v8, v3')
    E('v_lshlrev_b32 v8, 4, v8')
    E('v_lshl_add_u32 v4, v7, 8, v8')
    E('v_add_u32 v8, 4, v7')
    E('v_and_b32 v8, 15, v8')
    E('v_xor_b32 v8, v8, v3')
    E('v_lshlrev_b32 v8, 4, v8')
    E('v_lshl_add_u32 v5, v7, 8, v8')
    E('v_lshlrev_b32 v8, 2, v2')
    E('v_xor_b32 v8, v8, v3')
    E('v_lshlrev_b32 v8, 4, v8')
    E('v_lshl_add_u32 v6, v7, 8, v8')
    E(f's_lshl_b32 {s(sT1)}, {s(sLW)}, 11')
    issued = []
    def dma(tag, srd_, tile, ldsbase, va, vb):
        E(f's_add_u32 m0, {s(sT1)}, {ldsbase}')
        E(f's_mov_b32 {s(sT0)}, {tile*8192}')
        E(f'buffer_load_dwordx4 {v(va)}, {s(srd_,4)}, {s(sT0)} offen lds')
        E(f'buffer_load_dwordx4 {v(vb)}, {s(srd_,4)}, {s(sT0)} offen offset:1024 lds')
        issued.extend([tag, tag])
    def waitfor(tags):
        last = max(i for i, t in enumerate(issued) if t in tags)
        E(f's_waitcnt vmcnt({len(issued) - 1 - last})')
    vQ, vPq, vA, vD = 32, 96, 160, 224
    def loadQ():
        E(f's_lshl_b32 {s(sT0)}, {s(sLW)}, 14')
        E('v_lshlrev_b32 v9, 8, v3')
        E('v_lshl_add_u32 v9, v2, 4, v9')
        E(f'v_add_u32 v9, {s(sT0)}, v9')
        for b in range(4):
            for j in range(4):
                E(f'buffer_load_dwordx4 {v(vQ+b*16+j*4,4)}, v9, {s(sQ,4)}, {s(sB+b)} offen offset:{j*64}')
                issued.append(f'Q{b}')
    for t in range(4): dma('P', sP, t, PB + t*8192, 4, 5)
    if do_p1:
        dma('K0', sK, 0, KB, 4, 5)
        for i in range(1, 8):
            dma(f'K{i}', sK, i, KB + i*8192, 4, 5)
            dma(f'V{i-1}', sV, i-1, VB + (i-1)*8192, 6, 6)
        waitfor(['P', 'K0']); E('s_barrier')
        for i in range(1, 8):
            waitfor([f'K{i}', f'V{i-1}']); E('s_barrier')
            if i == 2:
                dma('V7', sV, 7, VB, 6, 6)
                if do_p2: loadQ()
        waitfor(['V7']); E('s_barrier')
    else:
        loadQ()
        waitfor(['P']); E('s_barrier')
    if do_p2:
        vPa, vQn = 10, 14
        for j in range(4):
            E(f'v_add_u32 v7, {4*j}, v2')
            E('v_xor_b32 v7, v7, v3')
            E('v_lshlrev_b32 v7, 4, v7')
            E(f'v_lshl_add_u32 v7, v3, 8, v7')
            E(f'v_add_u32 {v(vPa+j)}, {PB}, v7')
        def readP(u, buf):
            for tl in range(2):
                for j in range(4):
                    E(f'ds_read_b128 {v(vA+buf*32+(tl*4+j)*4,4)}, {v(vPa+j)} offset:{(2*u+tl)*4096}')
        for bp in range(2):
            readP(0, 0)
            waitfor([f'Q{2*bp+1}'])
            for bb in range(2):
                b = 2*bp + bb
                for i in range(16):
                    r = vQ + b*16 + i
                    if i < 2: E(f'v_dot2_f32_bf16 {v(20+i)}, {v(r)}, {v(r)}, 0')
                    else: E(f'v_dot2c_f32_bf16 {v(20+(i&1))}, {v(r)}, {v(r)}')
                E('v_add_f32 v20, v20, v21')
                E('v_mov_b32 v21, v20')
                E('v_permlane16_swap_b32 v20, v21')
                E('v_add_f32 v20, v20, v21')
                E('v_mov_b32 v21, v20')
                E('v_permlane32_swap_b32 v20, v21')
                E('v_add_f32 v20, v20, v21')
                E('v_mov_b32 v21, 0x40600000')
                E(f'v_fma_f32 {v(vQn+b)}, v20, {s(sC2)}, v21')
            for u in range(4):
                buf = u & 1
                if u < 3: readP(u+1, buf ^ 1)
                E(f's_waitcnt lgkmcnt({8 if u < 3 else 0})')
                for bb in range(2):
                    b = 2*bp + bb
                    for tl in range(2):
                        D = vD + buf*16 + (bb*2+tl)*4
                        for j in range(4):
                            E(f'v_mfma_f32_16x16x32_bf16 {v(D,4)}, {v(vA+buf*32+(tl*4+j)*4,4)}, {v(vQ+b*16+j*4,4)}, ' + ('0' if j == 0 else v(D,4)))
                for bb in range(2):
                    b = 2*bp + bb
                    for tl in range(2):
                        D = vD + buf*16 + (bb*2+tl)*4
                        for r in range(4): E(f'v_fma_f32 {v(D+r)}, {v(D+r)}, {s(sC1)}, -{v(vQn+b)}')
                        for r in range(4): E(f'v_exp_f32 {v(D+r)}, {v(D+r)}')
                        E(f'v_cvt_pk_bf16_f32 {v(vPq+b*16+u*4+tl*2)}, {v(D)}, {v(D+1)}')
                        E(f'v_cvt_pk_bf16_f32 {v(vPq+b*16+u*4+tl*2+1)}, {v(D+2)}, {v(D+3)}')
        E(f's_lshl_b32 {s(sT0)}, {s(sLW)}, 14')
        E('v_lshlrev_b32 v9, 10, v2')
        E('v_lshl_add_u32 v9, v3, 4, v9')
        E(f'v_add_u32 v9, {s(sT0)}, v9')
        E('v_lshlrev_b32 v7, 4, v0')
        E(f'v_lshlrev_b32 v8, 4, v2')
        E('s_barrier')
        vO, vF, vDen, vT = 160, 32, 232, 20
        for u in range(4): E(f'ds_read_b128 {v(vDen+4*u,4)}, v8 offset:{KSF+u*64}')
        for bp in range(2):
            frs = [(u, dt) for u in range(4) for dt in range(8)]
            NB = 12
            def rd(n):
                u, dt = frs[n]
                E(f'ds_read_b128 {v(vF+(n % NB)*4,4)}, v7 offset:{KVF+(u*8+dt)*1040}')
            for n in range(NB): rd(n)
            for n, (u, dt) in enumerate(frs):
                E(f's_waitcnt lgkmcnt({min(NB-1, len(frs)-1-n)})')
                for bb in range(2):
                    b = 2*bp + bb
                    A = vO + bb*36 + dt*4
                    E(f'v_mfma_f32_16x16x32_bf16 {v(A,4)}, {v(vPq+b*16+u*4,4)}, {v(vF+(n % NB)*4,4)}, ' + ('0' if u == 0 else v(A,4)))
                if dt == 0:
                    for bb in range(2):
                        b = 2*bp + bb
                        A = vO + bb*36 + 32
                        E(f'v_mfma_f32_16x16x32_bf16 {v(A,4)}, {v(vPq+b*16+u*4,4)}, {v(vDen+4*u,4)}, ' + ('0' if u == 0 else v(A,4)))
                if n + NB < len(frs): rd(n + NB)
            for bb in range(2):
                b = 2*bp + bb
                A = vO + bb*36
                for r in range(4): E(f'v_add_f32 {v(A+32+r)}, {s(sEPS)}, {v(A+32+r)}')
                for r in range(4): E(f'v_rcp_f32 {v(A+32+r)}, {v(A+32+r)}')
                for r in range(4):
                    T = 80 + (bb*4 + r) % 4 * 4
                    for dt in range(8): E(f'v_mul_f32 {v(A+dt*4+r)}, {v(A+dt*4+r)}, {v(A+32+r)}')
                    for e in range(4): E(f'v_cvt_pk_bf16_f32 {v(T+e)}, {v(A+2*e*4+r)}, {v(A+(2*e+1)*4+r)}')
                    E(f'buffer_store_dwordx4 {v(T,4)}, v9, {s(sO,4)}, {s(sB+b)} offen offset:{r*256}')
    E(f'{L("end")}:')
    E('s_endpgm')
    return E.render()

def desc(name):
    return f'''.section .rodata,"a"
.p2align 6
.amdhsa_kernel {name}
  .amdhsa_next_free_vgpr 256
  .amdhsa_next_free_sgpr 64
  .amdhsa_accum_offset 256
  .amdhsa_group_segment_fixed_size 0
  .amdhsa_kernarg_size 56
  .amdhsa_user_sgpr_count 2
  .amdhsa_user_sgpr_kernarg_segment_ptr 1
  .amdhsa_system_sgpr_workgroup_id_x 1
.end_amdhsa_kernel
'''
MAIN = 'standalone__linear_kernel_performer__prompt_kernel'
mode = sys.argv[1]
if mode == 'two':
    txt = HDR + f'; @launch kernel=pa_kernel grid=(256,1,1) block=(512,1,1) lds={LDS_BYTES}\n; @launch kernel=pb_kernel grid=(256,1,1) block=(512,1,1) lds={LDS_BYTES}\n'
    txt += '.amdgcn_target "amdgcn-amd-amdhsa--gfx950"\n.text\n'
    txt += kernel('pa_kernel', True, False, False) + kernel('pb_kernel', False, True, False)
    txt += desc('pa_kernel') + desc('pb_kernel')
else:
    txt = HDR + f'; @launch grid=(256,1,1) block=(512,1,1) lds={LDS_BYTES}\n'
    txt += '.amdgcn_target "amdgcn-amd-amdhsa--gfx950"\n.text\n'
    txt += kernel(MAIN, True, True, True) + desc(MAIN)
open(sys.argv[2], 'w').write(txt)
```

```python
import sys, struct, math
sys.path.insert(0, 'gen')
from asmlib import *

def f2u(x): return struct.unpack('<I', struct.pack('<f', x))[0]
SCALE = 128 ** -0.25
LOG2E = 1.4426950408889634
C1 = SCALE * LOG2E
C2 = 0.5 * SCALE * SCALE * LOG2E
HDR = open('standalone__linear_kernel_performer__prompt.s.ref').read().split('; Override')[0]

KB, VB, PB, SCR = 0, 65536, 122880, 155648
KVF, KSF = 0, 33280
LDS_BYTES = 163840
PSTR = 0x9000
sK, sV, sQ, sO, sP, sW, sD = 16, 20, 24, 28, 32, 36, 40
sWAVE, sHEAD, sCH, sT0, sT1, sC1, sC2, sLO, sHI, sLW, sB = 44, 45, 46, 47, 48, 49, 50, 51, 52, 53, 56
sEPS, sONES = 54, 55

STAMP = 'stamp' in sys.argv
NT = ' nt' if 'nt' in sys.argv else ''
def kernel(name, do_p1, do_p2, sync):
    E = Emitter()
    st = {'n': 0}
    def stamp():
        if not STAMP: return
        E('s_waitcnt lgkmcnt(0)')
        E('s_memrealtime s[62:63]')
        E('s_waitcnt lgkmcnt(0)')
        E(f's_mov_b32 s{66+st["n"]}, s62')
        st['n'] += 1
    def dump(role):
        if not STAMP: return
        stamp()
        E('v_mov_b32 v2, 0')
        for i in range(st['n']): E(f'v_writelane_b32 v2, s{66+i}, {i}')
        E(f's_lshl_b32 s62, s2, 3'); E(f's_add_u32 s62, s62, {s(sWAVE)}'); E('s_lshl_b32 s62, s62, 7')
        E('s_add_u32 s96, s60, 0x8000000'); E('s_addc_u32 s97, s61, 0'); E('s_mov_b32 s98, 0x100000'); E('s_mov_b32 s99, 0x20000')
        E('v_lshlrev_b32 v3, 2, v0')
        E('s_mov_b32 exec_hi, 0')
        E('buffer_store_dword v2, v3, s[96:99], s62 offen')
        E(f's_cmp_lg_u32 s2, 9'); E(f's_cbranch_scc1 {name}_nd{role}')
        E(f's_cmp_lg_u32 {s(sWAVE)}, {0 if role == 0 else 4}'); E(f's_cbranch_scc1 {name}_nd{role}')
        E('v_subrev_u32 v2, s66, v2')
        if role == 0:
            E('s_mov_b32 exec_lo, 0x1fff')
            E(f'buffer_store_short v2, v3, {s(sD,4)}, 0 offen')
        else:
            E('s_mov_b32 exec_lo, 0xffff')
            E(f'buffer_store_short v2, v3, {s(sD,4)}, 0 offen offset:2')
        E(f'{name}_nd{role}:')
        E('s_mov_b64 exec, -1')

    L = lambda x: f'{name}_{x}'
    E(f'.globl {name}\n.p2align 8\n.type {name},@function\n{name}:')
    E(f's_cmp_ge_u32 s2, 256')
    E(f's_cbranch_scc1 {L("end")}')
    E('s_load_dwordx4 s[4:7], s[0:1], 0')
    E('s_load_dwordx4 s[8:11], s[0:1], 16')
    E('s_load_dwordx4 s[12:15], s[0:1], 32')
    E('s_load_dwordx2 s[60:61], s[0:1], 48')
    E(f'v_lshrrev_b32 v1, 6, v0')
    E(f'v_and_b32 v0, 63, v0')
    E(f'v_readfirstlane_b32 {s(sWAVE)}, v1')
    E(f's_and_b32 {s(sHEAD)}, s2, 7')
    E(f's_lshr_b32 {s(sT0)}, s2, 6')
    E(f's_lshl_b32 {s(sT0)}, {s(sT0)}, 3')
    E(f's_or_b32 {s(sHEAD)}, {s(sHEAD)}, {s(sT0)}')
    E(f's_lshr_b32 {s(sCH)}, s2, 3')
    E(f's_and_b32 {s(sCH)}, {s(sCH)}, 7')
    E(f's_lshl_b32 {s(sT0)}, {s(sHEAD)}, 19')
    E(f's_lshl_b32 {s(sT1)}, {s(sCH)}, 16')
    E(f's_or_b32 {s(sT0)}, {s(sT0)}, {s(sT1)}')
    E(f's_mul_i32 {s(sT1)}, {s(sHEAD)}, {8*PSTR}')
    E(f's_mov_b32 {s(sC1)}, {f2u(C1)}')
    E(f's_mov_b32 {s(sC2)}, {f2u(C2)}')
    E(f's_mov_b32 {s(sLO)}, 0x00003f80')
    E(f's_mov_b32 {s(sHI)}, 0x3f800000')
    E(f's_mov_b32 {s(sONES)}, 0x3f803f80')
    E(f's_mov_b32 {s(sEPS)}, {f2u(1e-6)}')
    for b in range(4): E(f's_mov_b32 {s(sB+b)}, {b*4096}')
    E('s_waitcnt lgkmcnt(0)')
    def srd(d, base, off, size):
        if off is None:
            E(f's_mov_b32 {s(d)}, {s(base)}'); E(f's_mov_b32 {s(d+1)}, {s(base+1)}')
        else:
            E(f's_add_u32 {s(d)}, {s(base)}, {s(off)}'); E(f's_addc_u32 {s(d+1)}, {s(base+1)}, 0')
        E(f's_mov_b32 {s(d+2)}, {size}'); E(f's_mov_b32 {s(d+3)}, 0x00020000')
    srd(sK, 6, sT0, 65536); srd(sV, 8, sT0, 65536); srd(sP, 10, None, 32768)
    srd(sQ, 4, sT0, 65536); srd(sO, 12, sT0, 65536); srd(sD, 14, None, 256); srd(sW, 60, sT1, 8*PSTR)
    stamp()
    E(f's_cmp_ge_u32 {s(sWAVE)}, 4')
    E(f's_cbranch_scc1 {L("qrole")}')

    vKa, vVa, vNw, vNr, vKs, vDt = 10, 18, 22, 23, 24, 26
    vP, vK, vV, vS, vN, vPhi, vAcc = 32, 64, 96, 128, 144, 160, 176
    E.c('KV role')
    E('v_and_b32 v2, 31, v0')
    E('v_lshrrev_b32 v3, 5, v0')
    E('v_and_b32 v4, 15, v0')
    if do_p1:
        E('v_xor_b32 v5, v3, v4')
        E('v_lshlrev_b32 v5, 4, v5')
        E('v_lshl_add_u32 v5, v2, 8, v5')
        for j in range(8): E(f'v_xor_b32 {v(vKa+j)}, {32*j}, v5')
        E('v_lshrrev_b32 v5, 2, v4')
        E('v_lshl_add_u32 v6, v3, 2, v5')
        E('v_lshlrev_b32 v6, 8, v6')
        E('v_bfe_u32 v7, v0, 4, 1')
        E('v_lshl_add_u32 v6, v7, 5, v6')
        E('v_and_b32 v7, 3, v4')
        E('v_lshl_add_u32 v6, v7, 3, v6')
        E(f'v_add_u32 v6, {VB}, v6')
        for dt in range(4):
            E(f'v_xor_b32 v7, {dt}, v5')
            E(f'v_lshl_add_u32 {v(vVa+dt)}, v7, 6, v6')
        E(f's_lshl_b32 {s(sT0)}, {s(sWAVE)}, 7')
        E(f's_add_u32 {s(sT0)}, {s(sT0)}, {SCR}')
        E(f'v_lshl_add_u32 {v(vNw)}, v2, 2, {s(sT0)}')
        E(f'v_lshl_add_u32 {v(vNr)}, v3, 4, {s(sT0)}')
        E(f'v_mov_b32 {v(vKs)}, 0'); E(f'v_mov_b32 {v(vKs+1)}, 0')
        for i in range(64): E(f'v_mov_b32 {v(vAcc+i)}, 0')
        E(f's_lshl_b32 {s(sT0)}, {s(sWAVE)}, 13')
        E(f's_add_u32 {s(sT0)}, {s(sT0)}, {PB}')
        for j in range(8): E(f'v_add_u32 {v(vV+j)}, {s(sT0)}, {v(vKa+j)}')

        def readK(t):
            for j in range(8): E(f'ds_read_b128 {v(vK+4*j,4)}, {v(vKa+j)} offset:{KB+t*8192}')
        def readV(t):
            slot = t % 7
            for tt in range(2):
                for dt in range(4):
                    for hf in range(2):
                        E(f'ds_read_b64_tr_b16 {v(vV+(tt*4+dt)*4+2*hf,2)}, {v(vVa+dt)} offset:{slot*8192+(16*tt+8*hf)*256}')
        def kn_and_step1(nV):
            for j in range(8):
                E(f's_waitcnt lgkmcnt({min(15, nV + 7 - j)})')
                E(f'v_mfma_f32_32x32x16_bf16 {v(vS,16)}, {v(vK+4*j,4)}, {v(vP+4*j,4)}, ' + ('0' if j == 0 else v(vS,16)))
                for e in range(4):
                    r = vK + 4*j + e
                    if j == 0: E(f'v_dot2_f32_bf16 {v(vDt+e)}, {v(r)}, {v(r)}, 0')
                    else: E(f'v_dot2c_f32_bf16 {v(vDt+e)}, {v(r)}, {v(r)}')
            E(f'v_add_f32 {v(vDt)}, {v(vDt)}, {v(vDt+1)}')
            E(f'v_add_f32 {v(vDt+2)}, {v(vDt+2)}, {v(vDt+3)}')
            E(f'v_add_f32 {v(vDt)}, {v(vDt)}, {v(vDt+2)}')
            E(f'v_mov_b32 {v(vDt+1)}, {v(vDt)}')
            E(f'v_permlane32_swap_b32 {v(vDt)}, {v(vDt+1)}')
            E(f'v_add_f32 {v(vDt)}, {v(vDt)}, {v(vDt+1)}')
            E(f'v_mov_b32 {v(vDt+1)}, 0x40600000')
            E(f'v_fma_f32 {v(vDt)}, {v(vDt)}, {s(sC2)}, {v(vDt+1)}')
            E(f'ds_write_b32 {v(vNw)}, {v(vDt)}')
            E('s_waitcnt lgkmcnt(0)')
            for q in range(4): E(f'ds_read_b128 {v(vN+4*q,4)}, {v(vNr)} offset:{32*q}')
        def step2_list(pb):
            out = []
            for tt in range(2):
                for dt in range(4):
                    out.append(f'v_mfma_f32_32x32x16_bf16 {v(vAcc+16*dt,16)}, {v(pb+4*tt,4)}, {v(vV+(tt*4+dt)*4,4)}, {v(vAcc+16*dt,16)}')
            return out
        def expo(pb, mf):
            mf = list(mf)
            if mf: E(mf.pop(0))
            E('s_waitcnt lgkmcnt(0)')
            for r2 in range(8):
                r = 2*r2
                E(f'v_fma_f32 {v(vS+r)}, {v(vS+r)}, {s(sC1)}, -{v(vN+r)}')
                E(f'v_fma_f32 {v(vS+r+1)}, {v(vS+r+1)}, {s(sC1)}, -{v(vN+r+1)}')
                E(f'v_exp_f32 {v(vS+r)}, {v(vS+r)}')
                E(f'v_exp_f32 {v(vS+r+1)}, {v(vS+r+1)}')
                if mf: E(mf.pop(0))
                E(f'v_cvt_pk_bf16_f32 {v(pb+r2)}, {v(vS+r)}, {v(vS+r+1)}')
                E(f'v_dot2c_f32_bf16 {v(vKs+(r2&1))}, {s(sONES)}, {v(pb+r2)}')
            for m in mf: E(m)

        E('s_barrier')
        stamp()
        for j in range(8): E(f'ds_read_b128 {v(vP+4*j,4)}, {v(vV+j)}')
        readK(0)
        kn_and_step1(0)
        expo(vPhi, [])
        for i in range(1, 8):
            E.c(f'iter {i}')
            E('s_barrier')
            if i in (1, 2, 4, 6, 7): stamp()
            readK(i); readV(i-1)
            kn_and_step1(16)
            expo(vPhi + 8*(i & 1), step2_list(vPhi + 8*((i-1) & 1)))
        E('s_barrier')
        stamp()
        readV(7)
        for n, m in enumerate(step2_list(vPhi + 8)):
            E(f's_waitcnt lgkmcnt({14-2*n})')
            E(m)
        E.c('publish')
        stamp()
        E(f'v_add_f32 {v(vKs)}, {v(vKs)}, {v(vKs+1)}')
        E(f'v_mov_b32 {v(vKs+1)}, {v(vKs)}')
        E(f'v_permlane32_swap_b32 {v(vKs)}, {v(vKs+1)}')
        E(f'v_add_f32 {v(vKs)}, {v(vKs)}, {v(vKs+1)}')
        E(f's_mul_i32 {s(sT0)}, {s(sCH)}, {PSTR}')
        E(f's_lshl_b32 {s(sT1)}, {s(sWAVE)}, 13')
        E(f's_add_u32 {s(sT1)}, {s(sT1)}, {s(sT0)}')
        E(f'v_lshlrev_b32 v5, 4, v0')
        E(f'v_add_u32 v6, 4096, v5')
        for dt in range(4):
            for qq in range(2):
                o = vK + (dt*2+qq)*4
                A = vAcc + 16*dt
                E(f'v_cvt_pk_bf16_f32 {v(o)}, {v(A+4*qq)}, {v(A+4*qq+1)}')
                E(f'v_cvt_pk_bf16_f32 {v(o+1)}, {v(A+4*qq+2)}, {v(A+4*qq+3)}')
                E(f'v_cvt_pk_bf16_f32 {v(o+2)}, {v(A+4*qq+8)}, {v(A+4*qq+9)}')
                E(f'v_cvt_pk_bf16_f32 {v(o+3)}, {v(A+4*qq+10)}, {v(A+4*qq+11)}')
                un = dt*2+qq
                E(f'buffer_store_dwordx4 {v(o,4)}, {v(5+(un>>2))}, {s(sW,4)}, {s(sT1)} offen offset:{(un&3)*1024} sc1')
        E(f's_lshl_b32 {s(sT1)}, {s(sWAVE)}, 7')
        E(f's_add_u32 {s(sT1)}, {s(sT1)}, {s(sT0)}')
        E(f's_add_u32 {s(sT1)}, {s(sT1)}, 0x8000')
        E(f'v_lshlrev_b32 v7, 2, v2')
        E(f'buffer_store_dword {v(vKs)}, v7, {s(sW,4)}, {s(sT1)} offen sc1')
        E('s_waitcnt vmcnt(0)')
        stamp()
        if sync:
            E(f's_lshl_b32 {s(sT0)}, {s(sHEAD)}, 2')
            E(f's_add_u32 {s(sT0)}, {s(sT0)}, 128')
            E('v_mov_b32 v8, 1'); E('v_mov_b32 v9, 0')
            E('s_mov_b64 exec, 1')
            E(f'buffer_atomic_add v8, v9, {s(sD,4)}, {s(sT0)} offen sc1')
            E('s_mov_b64 exec, -1')
    else:
        E('s_barrier')
    if do_p2:
        if sync:
            E('s_mov_b32 s64, 0')
            E(f'{L("poll")}:')
            E('s_add_u32 s64, s64, 1')
            E('s_cmp_ge_u32 s64, 200000')
            E(f's_cbranch_scc1 {L("polled")}')
            E(f'buffer_load_dword v8, v9, {s(sD,4)}, {s(sT0)} offen sc1')
            E('s_waitcnt vmcnt(0)')
            E(f'v_readfirstlane_b32 {s(sT1)}, v8')
            E(f's_cmp_ge_u32 {s(sT1)}, 32')
            E(f's_cbranch_scc1 {L("polled")}')
            E('s_sleep 2')
            E(f's_branch {L("poll")}')
            E(f'{L("polled")}:')
        E.c('reduce')
        stamp()
        vBuf = 32
        vKp = 160
        E(f'v_lshlrev_b32 v5, 4, v0')
        E(f'v_add_u32 v6, 4096, v5')
        E(f'v_lshlrev_b32 v7, 2, v2')
        E(f's_lshl_b32 {s(sT1)}, {s(sWAVE)}, 7')
        E(f's_add_u32 {s(sT1)}, {s(sT1)}, 0x8000')
        for p in range(8):
            E(f'buffer_load_dword {v(vKp+p)}, v7, {s(sW,4)}, {s(sT1)} offen sc1')
            if p < 7: E(f's_add_u32 {s(sT1)}, {s(sT1)}, {PSTR}')
        E(f's_lshl_b32 {s(sT1)}, {s(sWAVE)}, 13')
        def ldp(p):
            for un in range(8):
                E(f'buffer_load_dwordx4 {v(vBuf+(p&3)*32+un*4,4)}, {v(5+(un>>2))}, {s(sW,4)}, {s(sT1)} offen offset:{(un&3)*1024} sc1')
            if p < 7: E(f's_add_u32 {s(sT1)}, {s(sT1)}, {PSTR}')
        for p in range(4): ldp(p)
        E('v_and_b32 v8, 7, v2')
        E('v_mul_u32_u24 v8, 1040, v8')
        E('v_lshl_add_u32 v8, v3, 8, v8')
        E('v_lshrrev_b32 v9, 3, v2')
        E('v_lshl_add_u32 v8, v9, 4, v8')
        E(f's_mul_i32 {s(sT0)}, {s(sWAVE)}, 8320')
        E(f'v_add_u32 v8, {s(sT0)}, v8')
        E('v_bfe_u32 v9, v2, 2, 2')
        E('v_lshlrev_b32 v9, 4, v9')
        E('v_lshrrev_b32 v10, 4, v2')
        E('v_lshl_add_u32 v9, v10, 3, v9')
        E('v_and_b32 v10, 3, v2')
        E('v_lshl_add_u32 v9, v10, 1, v9')
        E(f's_lshl_b32 {s(sT0)}, {s(sWAVE)}, 6')
        E(f's_add_u32 {s(sT0)}, {s(sT0)}, {KSF}')
        E(f'v_add_u32 v9, {s(sT0)}, v9')
        E('s_waitcnt vmcnt(32)')
        for p in range(1, 8): E(f'v_add_f32 {v(vKp)}, {v(vKp)}, {v(vKp+p)}')
        E(f'v_cvt_pk_bf16_f32 {v(vKp)}, {v(vKp)}, {v(vKp)}')
        E(f'ds_write_b16 v9, {v(vKp)}')
        for p in range(8):
            out = min(7, p + 3) - p
            E(f's_waitcnt vmcnt({out*8})')
            B = vBuf + (p & 3)*32
            for i in range(32):
                if p == 0:
                    E(f'v_lshlrev_b32 {v(vAcc+2*i)}, 16, {v(B+i)}')
                    E(f'v_and_b32 {v(vAcc+2*i+1)}, 0xffff0000, {v(B+i)}')
                else:
                    E(f'v_dot2c_f32_bf16 {v(vAcc+2*i)}, {s(sLO)}, {v(B+i)}')
                    E(f'v_dot2c_f32_bf16 {v(vAcc+2*i+1)}, {s(sHI)}, {v(B+i)}')
            if p + 4 < 8: ldp(p + 4)
        for un in range(8):
            dt, qq = un >> 1, un & 1
            for e in range(4):
                E(f'v_cvt_pk_bf16_f32 {v(vBuf+un*4+e)}, {v(vAcc+un*8+2*e)}, {v(vAcc+un*8+2*e+1)}')
            E(f'ds_write_b128 v8, {v(vBuf+un*4,4)} offset:{KVF+qq*512+dt*64}')
        E('s_waitcnt lgkmcnt(0)')
        stamp()
        E('s_barrier')
    dump(0)
    E('s_endpgm')
    st['n'] = 1

    E(f'{L("qrole")}:')
    E(f's_sub_u32 {s(sLW)}, {s(sWAVE)}, 4')
    E('v_lshrrev_b32 v2, 4, v0')
    E('v_and_b32 v3, 15, v0')
    E(f's_lshl_b32 {s(sT0)}, {s(sLW)}, 3')
    E(f'v_add_u32 v7, {s(sT0)}, v2')
    E('v_and_b32 v8, 15, v7')
    E('v_xor_b32 v8, v8, v3')
    E('v_lshlrev_b32 v8, 4, v8')
    E('v_lshl_add_u32 v4, v7, 8, v8')
    E('v_add_u32 v8, 4, v7')
    E('v_and_b32 v8, 15, v8')
    E('v_xor_b32 v8, v8, v3')
    E('v_lshlrev_b32 v8, 4, v8')
    E('v_lshl_add_u32 v5, v7, 8, v8')
    E('v_lshlrev_b32 v8, 2, v2')
    E('v_xor_b32 v8, v8, v3')
    E('v_lshlrev_b32 v8, 4, v8')
    E('v_lshl_add_u32 v6, v7, 8, v8')
    E(f's_lshl_b32 {s(sT1)}, {s(sLW)}, 11')
    issued = []
    def dma(tag, srd_, tile, ldsbase, va, vb):
        E(f's_add_u32 m0, {s(sT1)}, {ldsbase}')
        E(f's_mov_b32 {s(sT0)}, {tile*8192}')
        nt = NT if tag != 'P' else ''
        E(f'buffer_load_dwordx4 {v(va)}, {s(srd_,4)}, {s(sT0)} offen{nt} lds')
        E(f'buffer_load_dwordx4 {v(vb)}, {s(srd_,4)}, {s(sT0)} offen offset:1024{nt} lds')
        issued.extend([tag, tag])
    def waitfor(tags):
        last = max(i for i, t in enumerate(issued) if t in tags)
        E(f's_waitcnt vmcnt({len(issued) - 1 - last})')
    vQ, vPq, vA, vD = 32, 96, 160, 224
    def loadQ():
        E(f's_lshl_b32 {s(sT0)}, {s(sLW)}, 14')
        E('v_lshlrev_b32 v9, 8, v3')
        E('v_lshl_add_u32 v9, v2, 4, v9')
        E(f'v_add_u32 v9, {s(sT0)}, v9')
        for b in range(4):
            for j in range(4):
                E(f'buffer_load_dwordx4 {v(vQ+b*16+j*4,4)}, v9, {s(sQ,4)}, {s(sB+b)} offen offset:{j*64}{NT}')
                issued.append(f'Q{b}')
    for t in range(4): dma('P', sP, t, PB + t*8192, 4, 5)
    if do_p1:
        dma('K0', sK, 0, KB, 4, 5)
        for i in range(1, 8):
            dma(f'K{i}', sK, i, KB + i*8192, 4, 5)
            dma(f'V{i-1}', sV, i-1, VB + (i-1)*8192, 6, 6)
        stamp()
        waitfor(['P', 'K0']); stamp(); E('s_barrier')
        for i in range(1, 8):
            waitfor([f'K{i}', f'V{i-1}']); E('s_barrier')
            if i == 2:
                dma('V7', sV, 7, VB, 6, 6)
                if do_p2: loadQ()
        waitfor(['V7']); stamp(); E('s_barrier')
    else:
        loadQ()
        waitfor(['P']); E('s_barrier')
    if do_p2:
        vPa, vQn = 10, 14
        for j in range(4):
            E(f'v_add_u32 v7, {4*j}, v2')
            E('v_xor_b32 v7, v7, v3')
            E('v_lshlrev_b32 v7, 4, v7')
            E(f'v_lshl_add_u32 v7, v3, 8, v7')
            E(f'v_add_u32 {v(vPa+j)}, {PB}, v7')
        def readP(u, buf):
            for tl in range(2):
                for j in range(4):
                    E(f'ds_read_b128 {v(vA+buf*32+(tl*4+j)*4,4)}, {v(vPa+j)} offset:{(2*u+tl)*4096}')
        for bp in range(2):
            readP(0, 0)
            waitfor([f'Q{2*bp+1}'])
            stamp()
            for bb in range(2):
                b = 2*bp + bb
                for i in range(16):
                    r = vQ + b*16 + i
                    if i < 2: E(f'v_dot2_f32_bf16 {v(20+i)}, {v(r)}, {v(r)}, 0')
                    else: E(f'v_dot2c_f32_bf16 {v(20+(i&1))}, {v(r)}, {v(r)}')
                E('v_add_f32 v20, v20, v21')
                E('v_mov_b32 v21, v20')
                E('v_permlane16_swap_b32 v20, v21')
                E('v_add_f32 v20, v20, v21')
                E('v_mov_b32 v21, v20')
                E('v_permlane32_swap_b32 v20, v21')
                E('v_add_f32 v20, v20, v21')
                E('v_mov_b32 v21, 0x40600000')
                E(f'v_fma_f32 {v(vQn+b)}, v20, {s(sC2)}, v21')
            for u in range(4):
                buf = u & 1
                if u < 3: readP(u+1, buf ^ 1)
                E(f's_waitcnt lgkmcnt({8 if u < 3 else 0})')
                for bb in range(2):
                    b = 2*bp + bb
                    for tl in range(2):
                        D = vD + buf*16 + (bb*2+tl)*4
                        for j in range(4):
                            E(f'v_mfma_f32_16x16x32_bf16 {v(D,4)}, {v(vA+buf*32+(tl*4+j)*4,4)}, {v(vQ+b*16+j*4,4)}, ' + ('0' if j == 0 else v(D,4)))
                for bb in range(2):
                    b = 2*bp + bb
                    for tl in range(2):
                        D = vD + buf*16 + (bb*2+tl)*4
                        for r in range(4): E(f'v_fma_f32 {v(D+r)}, {v(D+r)}, {s(sC1)}, -{v(vQn+b)}')
                        for r in range(4): E(f'v_exp_f32 {v(D+r)}, {v(D+r)}')
                        E(f'v_cvt_pk_bf16_f32 {v(vPq+b*16+u*4+tl*2)}, {v(D)}, {v(D+1)}')
                        E(f'v_cvt_pk_bf16_f32 {v(vPq+b*16+u*4+tl*2+1)}, {v(D+2)}, {v(D+3)}')
        E(f's_lshl_b32 {s(sT0)}, {s(sLW)}, 14')
        E('v_lshlrev_b32 v9, 10, v2')
        E('v_lshl_add_u32 v9, v3, 4, v9')
        E(f'v_add_u32 v9, {s(sT0)}, v9')
        E('v_lshlrev_b32 v7, 4, v0')
        E(f'v_lshlrev_b32 v8, 4, v2')
        stamp()
        E('s_barrier')
        stamp()
        vO, vF, vDen, vT = 160, 32, 232, 20
        for u in range(4): E(f'ds_read_b128 {v(vDen+4*u,4)}, v8 offset:{KSF+u*64}')
        for bp in range(2):
            frs = [(u, dt) for u in range(4) for dt in range(8)]
            NB = 12
            def rd(n):
                u, dt = frs[n]
                E(f'ds_read_b128 {v(vF+(n % NB)*4,4)}, v7 offset:{KVF+(u*8+dt)*1040}')
            for n in range(NB): rd(n)
            for n, (u, dt) in enumerate(frs):
                E(f's_waitcnt lgkmcnt({min(NB-1, len(frs)-1-n)})')
                for bb in range(2):
                    b = 2*bp + bb
                    A = vO + bb*36 + dt*4
                    E(f'v_mfma_f32_16x16x32_bf16 {v(A,4)}, {v(vPq+b*16+u*4,4)}, {v(vF+(n % NB)*4,4)}, ' + ('0' if u == 0 else v(A,4)))
                if dt == 0:
                    for bb in range(2):
                        b = 2*bp + bb
                        A = vO + bb*36 + 32
                        E(f'v_mfma_f32_16x16x32_bf16 {v(A,4)}, {v(vPq+b*16+u*4,4)}, {v(vDen+4*u,4)}, ' + ('0' if u == 0 else v(A,4)))
                if n + NB < len(frs): rd(n + NB)
            stamp()
            for bb in range(2):
                b = 2*bp + bb
                A = vO + bb*36
                for r in range(4): E(f'v_add_f32 {v(A+32+r)}, {s(sEPS)}, {v(A+32+r)}')
                for r in range(4): E(f'v_rcp_f32 {v(A+32+r)}, {v(A+32+r)}')
                for r in range(4):
                    T = 80 + (bb*4 + r) % 4 * 4
                    for dt in range(8): E(f'v_mul_f32 {v(A+dt*4+r)}, {v(A+dt*4+r)}, {v(A+32+r)}')
                    for e in range(4): E(f'v_cvt_pk_bf16_f32 {v(T+e)}, {v(A+2*e*4+r)}, {v(A+(2*e+1)*4+r)}')
                    E(f'buffer_store_dwordx4 {v(T,4)}, v9, {s(sO,4)}, {s(sB+b)} offen offset:{r*256}')
    if STAMP:
        stamp()
        E('s_waitcnt vmcnt(0)')
    dump(1)
    E(f'{L("end")}:')
    E('s_endpgm')
    return E.render()

def desc(name):
    return f'''.section .rodata,"a"
.p2align 6
.amdhsa_kernel {name}
  .amdhsa_next_free_vgpr 256
  .amdhsa_next_free_sgpr 102
  .amdhsa_accum_offset 256
  .amdhsa_group_segment_fixed_size 0
  .amdhsa_kernarg_size 56
  .amdhsa_user_sgpr_count 2
  .amdhsa_user_sgpr_kernarg_segment_ptr 1
  .amdhsa_system_sgpr_workgroup_id_x 1
.end_amdhsa_kernel
'''
MAIN = 'standalone__linear_kernel_performer__prompt_kernel'
mode = sys.argv[1]
if mode == 'two':
    txt = HDR + f'; @launch kernel=pa_kernel grid=(256,1,1) block=(512,1,1) lds={LDS_BYTES}\n; @launch kernel=pb_kernel grid=(256,1,1) block=(512,1,1) lds={LDS_BYTES}\n'
    txt += '.amdgcn_target "amdgcn-amd-amdhsa--gfx950"\n.text\n'
    txt += kernel('pa_kernel', True, False, False) + kernel('pb_kernel', False, True, False)
    txt += desc('pa_kernel') + desc('pb_kernel')
else:
    txt = HDR + f'; @launch grid=(256,1,1) block=(512,1,1) lds={LDS_BYTES}\n'
    txt += '.amdgcn_target "amdgcn-amd-amdhsa--gfx950"\n.text\n'
    txt += kernel(MAIN, True, True, True) + desc(MAIN)
open(sys.argv[2], 'w').write(txt)
```

```python
import sys, re
sys.path.insert(0, 'gen')
from asmlib import *
base = open(sys.argv[1]).read()
out = sys.argv[2]
where = sys.argv[3]
src = sys.argv[4]
flags = sys.argv[5] if len(sys.argv) > 5 else ''
wsoff = int(sys.argv[6]) if len(sys.argv) > 6 else 64
name = 'probe_kernel'
E = Emitter()
E(f'.text\n.globl {name}\n.p2align 8\n.type {name},@function\n{name}:')
nwg, nthr = 256, 512
per_wg = (16 << 20) // nwg
per_thr = per_wg // nthr // 16
E(f's_cmp_ge_u32 s2, {nwg}\ns_cbranch_scc1 Lpend')
E('s_load_dwordx4 s[4:7], s[0:1], 0\ns_load_dwordx4 s[8:11], s[0:1], 16\ns_load_dwordx2 s[12:13], s[0:1], 48')
E(f's_mul_i32 s3, s2, {per_wg}')
E('v_lshlrev_b32 v1, 4, v0')
E('s_waitcnt lgkmcnt(0)')
for n, (d, b) in enumerate(((16, 6), (20, 8), (24, 4))):
    if src == 'in':
        E(f's_add_u32 s{d}, s{b}, s3\ns_addc_u32 s{d+1}, s{b+1}, 0')
    else:
        E(f's_add_u32 s14, s3, {(wsoff + 16*n) << 20}')
        E(f's_add_u32 s{d}, s12, s14\ns_addc_u32 s{d+1}, s13, 0')
    E(f's_mov_b32 s{d+2}, {per_wg}\ns_mov_b32 s{d+3}, 0x20000')
E(f's_add_u32 s28, s12, {200 << 20}\ns_addc_u32 s29, s13, 0\ns_mov_b32 s30, 65536\ns_mov_b32 s31, 0x20000')
r = 4; regs = []
for d in (16, 20, 24):
    for i in range(per_thr):
        E(f's_mov_b32 s3, {i*nthr*16}')
        E(f'buffer_load_dwordx4 {v(r,4)}, v1, s[{d}:{d+3}], s3 offen {flags}')
        regs.append(r); r += 4
E('s_waitcnt vmcnt(0)')
for rr in regs[1:]:
    for e in range(4): E(f'v_xor_b32 {v(4+e)}, {v(4+e)}, {v(rr+e)}')
E('v_xor_b32 v4, v4, v5\nv_xor_b32 v6, v6, v7\nv_xor_b32 v4, v4, v6')
E('v_cmp_eq_u32 vcc, 0x12345678, v4\ns_and_saveexec_b64 s[40:41], vcc\ns_cbranch_execz Lpend')
E(f'buffer_store_dwordx4 v[4:7], v1, s[28:31], 0 offen')
E('Lpend:\ns_endpgm')
desc = f'''.section .rodata,"a"
.p2align 6
.amdhsa_kernel {name}
  .amdhsa_next_free_vgpr 104
  .amdhsa_next_free_sgpr 64
  .amdhsa_accum_offset 104
  .amdhsa_group_segment_fixed_size 0
  .amdhsa_kernarg_size 56
  .amdhsa_user_sgpr_count 2
  .amdhsa_user_sgpr_kernarg_segment_ptr 1
  .amdhsa_system_sgpr_workgroup_id_x 1
.end_amdhsa_kernel
'''
line = f'; @launch kernel={name} grid=(256,1,1) block=(512,1,1) lds=0\n'
lines = base.split('\n')
idx = [i for i, l in enumerate(lines) if l.startswith('; @launch')]
if where == 'pre': lines.insert(idx[0], line.strip())
else: lines.insert(idx[-1] + 1, line.strip())
txt = '\n'.join(lines)
i = txt.index('.section .rodata')
txt = txt[:i] + E.render() + txt[i:] + desc
open(out, 'w').write(txt)
```

```python
import sys
base = open(sys.argv[1]).read().split('\n')
out, role, col, mul = sys.argv[2], int(sys.argv[3]), int(sys.argv[4]), int(sys.argv[5])
mode = sys.argv[6] if len(sys.argv) > 6 else 'max'
i = [k for k, l in enumerate(base) if l.startswith('; @launch')][0]
lds = base[i].split('lds=')[1]
l1 = f'; @launch kernel=standalone__linear_kernel_performer__prompt_kernel grid=(256,1,1) block=(512,1,1) lds={lds}'
l2 = '; @launch kernel=rep_kernel grid=(1,1,1) block=(1024,1,1) lds=64'
txt = '\n'.join(base[:i] + [l1, l2] + base[i+1:])
op = 'ds_max_u32' if mode == 'max' else 'ds_min_u32'
init = '0' if mode == 'max' else '-1'
k = f'''.text
.globl rep_kernel
.p2align 8
.type rep_kernel,@function
rep_kernel:
    s_cmp_ge_u32 s2, 1
    s_cbranch_scc1 Lr_end
    s_load_dwordx2 s[4:5], s[0:1], 48
    v_mov_b32 v1, 0
    v_mov_b32 v2, {init}
    v_mov_b32 v3, -1
    ds_write_b32 v1, v2
    ds_write_b32 v1, v3 offset:4
    v_lshrrev_b32 v4, 2, v0
    v_lshlrev_b32 v4, 3, v4
    v_and_b32 v5, 3, v0
    v_add_u32 v4, v4, v5
    v_add_u32 v4, {4*role}, v4
    v_lshlrev_b32 v4, 7, v4
    s_waitcnt lgkmcnt(0)
    s_add_u32 s8, s4, 0x8000000
    s_addc_u32 s9, s5, 0
    s_mov_b32 s10, 0x100000
    s_mov_b32 s11, 0x20000
    buffer_load_dword v6, v4, s[8:11], 0 offen
    buffer_load_dword v7, v4, s[8:11], 0 offen offset:{4*col}
    s_barrier
    s_waitcnt vmcnt(0)
    {op} v1, v7
    ds_min_u32 v1, v6 offset:4
    s_waitcnt lgkmcnt(0)
    s_barrier
    ds_read_b64 v[8:9], v1
    s_waitcnt lgkmcnt(0)
    v_sub_u32 v8, v8, v9
    s_nop 1
    v_readfirstlane_b32 s12, v8
    s_nop 3
    s_min_u32 s12, s12, 5000
    s_mul_i32 s12, s12, {mul}
    s_memrealtime s[14:15]
    s_waitcnt lgkmcnt(0)
    s_add_u32 s12, s12, s14
Lr_spin:
    s_memrealtime s[14:15]
    s_waitcnt lgkmcnt(0)
    s_sub_u32 s13, s12, s14
    s_cmp_gt_i32 s13, 0
    s_cbranch_scc1 Lr_spin
Lr_end:
    s_endpgm
'''
d = '''.section .rodata,"a"
.p2align 6
.amdhsa_kernel rep_kernel
  .amdhsa_next_free_vgpr 16
  .amdhsa_next_free_sgpr 24
  .amdhsa_accum_offset 16
  .amdhsa_group_segment_fixed_size 0
  .amdhsa_kernarg_size 56
  .amdhsa_user_sgpr_count 2
  .amdhsa_user_sgpr_kernarg_segment_ptr 1
  .amdhsa_system_sgpr_workgroup_id_x 1
.end_amdhsa_kernel
'''
j = txt.index('.section .rodata')
open(out, 'w').write(txt[:j] + k + txt[j:] + d)
```
